```python
import torch

def _softmax(x, axis=-1):
    return torch.softmax(x, dim=axis)
def _gelu(x):
    return torch.nn.functional.gelu(x, approximate="tanh")
def _silu(x):
    return torch.nn.functional.silu(x)
def _sigmoid(x):
    return torch.sigmoid(x)
def _layernorm(x, axis=-1, eps=1e-5):
    m = x.mean(dim=axis, keepdim=True)
    v = x.var(dim=axis, keepdim=True, unbiased=False)
    return (x - m) / torch.sqrt(v + eps)
def _scatter_add(tgt, idx, src, axis=0):
    return tgt.clone().index_add_(axis, idx, src)
def _segment_sum(src, seg, n):
    out = torch.zeros((n,) + src.shape[1:], dtype=src.dtype)
    return out.index_add_(0, seg, src)
def _pad(x, pw):
    flat = tuple(v for pair in reversed(pw) for v in pair)
    return torch.nn.functional.pad(x, flat)

kernel_name = 'concat_heads__gqa_block_cached__gqa_block_cached__decode'

def setup_inputs():

    _w = (lambda a: (lambda t: t.to(torch.bfloat16) if t.is_floating_point() else t)(torch.as_tensor(a)))
    def _A_setup():
        B, Sq, D = 4, 1, 512
        Hq, Hkv, Sk, Dh = 32, 8, 4096, 128
        assert Hq % Hkv == 0, (Hq, Hkv)
        return {
            "x": _w((lambda *s: torch.randn(*s, dtype=torch.bfloat16) * 0.8)(B, Sq, D)),
            "k_cache": _w((lambda *s: torch.randn(*s, dtype=torch.bfloat16) * 0.8)(B, Hkv, Sk, Dh)),
            "v_cache": _w((lambda *s: torch.randn(*s, dtype=torch.bfloat16) * 0.05)(B, Hkv, Sk, Dh)),
            "wq": _w((lambda *s: torch.randn(*s, dtype=torch.bfloat16) * 0.8)(D, Hq * Dh) * (D ** -0.5)),
            "wo": _w((lambda *s: torch.randn(*s, dtype=torch.bfloat16) * 0.05)(Hq * Dh, D) * ((Hq * Dh) ** -0.5)),
        }
    _A_in = _A_setup()

    def _B_setup():
        B, Sq, D = 4, 1, 512
        Hq, Hkv, Sk, Dh = 32, 8, 4096, 128
        assert Hq % Hkv == 0, (Hq, Hkv)
        return {
            "x": _w((lambda *s: torch.randn(*s, dtype=torch.bfloat16) * 0.8)(B, Sq, D)),
            "k_cache": _w((lambda *s: torch.randn(*s, dtype=torch.bfloat16) * 0.8)(B, Hkv, Sk, Dh)),
            "v_cache": _w((lambda *s: torch.randn(*s, dtype=torch.bfloat16) * 0.05)(B, Hkv, Sk, Dh)),
            "wq": _w((lambda *s: torch.randn(*s, dtype=torch.bfloat16) * 0.8)(D, Hq * Dh) * (D ** -0.5)),
            "wo": _w((lambda *s: torch.randn(*s, dtype=torch.bfloat16) * 0.05)(Hq * Dh, D) * ((Hq * Dh) ** -0.5)),
        }
    _B_in = _B_setup()

    return {
        "A_x": _A_in["x"],
        "A_k_cache": _A_in["k_cache"],
        "A_v_cache": _A_in["v_cache"],
        "A_wq": _A_in["wq"],
        "A_wo": _A_in["wo"],
        "B_x": _B_in["x"],
        "B_k_cache": _B_in["k_cache"],
        "B_v_cache": _B_in["v_cache"],
        "B_wq": _B_in["wq"],
        "B_wo": _B_in["wo"],
    }

def reference(A_x, A_k_cache, A_v_cache, A_wq, A_wo, B_x, B_k_cache, B_v_cache, B_wq, B_wo):
    def _A_ref(x, k_cache, v_cache, wq, wo):
        B, Sq, D = x.shape
        Hq, Dh = 32, 128
        Hkv = k_cache.shape[1]
        rep = Hq // Hkv
        q = (lambda x, *d: x.permute(*d))((x @ wq).reshape(B, Sq, Hq, Dh), 0, 2, 1, 3)
        k = (lambda x, n, axis: torch.repeat_interleave(x, n, dim=axis))(k_cache, rep, axis=1)
        v = (lambda x, n, axis: torch.repeat_interleave(x, n, dim=axis))(v_cache, rep, axis=1)
        scores = torch.einsum("bhqd,bhkd->bhqk", q, k) * (Dh ** -0.5)
        p = _softmax(scores, axis=-1)
        o = torch.einsum("bhqk,bhkd->bhqd", p, v)
        return (lambda x, *d: x.permute(*d))(o, 0, 2, 1, 3).reshape(B, Sq, Hq * Dh) @ wo

    def _B_ref(x, k_cache, v_cache, wq, wo):
        B, Sq, D = x.shape
        Hq, Dh = 32, 128
        Hkv = k_cache.shape[1]
        rep = Hq // Hkv
        q = (lambda x, *d: x.permute(*d))((x @ wq).reshape(B, Sq, Hq, Dh), 0, 2, 1, 3)
        k = (lambda x, n, axis: torch.repeat_interleave(x, n, dim=axis))(k_cache, rep, axis=1)
        v = (lambda x, n, axis: torch.repeat_interleave(x, n, dim=axis))(v_cache, rep, axis=1)
        scores = torch.einsum("bhqd,bhkd->bhqk", q, k) * (Dh ** -0.5)
        p = _softmax(scores, axis=-1)
        o = torch.einsum("bhqk,bhkd->bhqd", p, v)
        return (lambda x, *d: x.permute(*d))(o, 0, 2, 1, 3).reshape(B, Sq, Hq * Dh) @ wo

    a = _A_ref(A_x, A_k_cache, A_v_cache, A_wq, A_wo)
    b = _B_ref(B_x, B_k_cache, B_v_cache, B_wq, B_wo)
    return torch.concatenate([a, b], axis=-1)
```

```python
import sys, math
NAME = "concat_heads__gqa_block_cached__gqa_block_cached__decode"
HDR = open("cdna_kernels/" + NAME + ".s.ref").read().split("; Override launch")[0]

QRED = 0
QB   = 0x4800
MX   = 0x4C00
OB   = 0x5000
WOT  = 0x8000
LDS_BYTES = 0x10000
WS_Q, WS_O, WS_ML, WS_OUT = 0x100000, 0x200000, 0x300000, 0x400000
STAMP_OFF = 0x8000000

def gen(nt="nt", stamps=False, spin=200000, b1=2, ntw="nt"):
    L = []
    def A(s): L.append("    " + s)
    def LBL(s): L.append(s + ":")
    nst = [0]
    def STAMP():
        if stamps:
            A(f"s_memrealtime s[{76+2*nst[0]}:{77+2*nst[0]}]")
            nst[0] += 1
    L.append(HDR.rstrip("\n"))
    L.append(f"; @launch grid=(256,1,1) block=(512,1,1) lds={LDS_BYTES}")
    L.append('.amdgcn_target "amdgcn-amd-amdhsa--gfx950"')
    L.append(".text"); L.append(f".globl {NAME}_kernel"); L.append(".p2align 8")
    L.append(f".type {NAME}_kernel,@function"); LBL(f"{NAME}_kernel")
    STAMP()
    A("s_cmp_ge_u32 s2, 256"); A("s_cbranch_scc1 L_end")
    A("s_lshr_b32 s28, s2, 7")
    A("s_mul_i32 s3, s28, 40")
    A("s_add_u32 s4, s0, s3"); A("s_addc_u32 s5, s1, 0")
    A("s_load_dwordx8 s[8:15], s[4:5], 0")
    A("s_load_dwordx2 s[16:17], s[4:5], 32")
    A("s_load_dwordx2 s[18:19], s[0:1], 80")
    A("s_load_dwordx2 s[20:21], s[0:1], 96")
    A("v_lshrrev_b32 v9, 6, v0"); A("v_and_b32 v0, 63, v0")
    A("v_lshrrev_b32 v1, 4, v0")
    A("v_readfirstlane_b32 s23, v9")
    A("v_and_b32 v2, 15, v0")
    A("s_bfe_u32 s24, s2, 0x20002")
    A("s_and_b32 s25, s2, 3")
    A("s_bfe_u32 s26, s2, 0x30004")
    A("s_lshr_b32 s27, s2, 4")
    for i in range(8): A(f"s_mov_b32 s{44+i}, {i*4096}")
    A("v_lshlrev_b32 v3, 8, v2"); A("v_lshl_add_u32 v3, v1, 4, v3")
    A("v_lshlrev_b32 v4, 4, v2")
    A("v_lshl_add_u32 v5, v1, 15, v4")
    A("v_lshl_add_u32 v4, v1, 10, v4")
    A("v_lshrrev_b32 v9, 2, v2"); A("v_lshlrev_b32 v10, 10, v9"); A("v_lshl_add_u32 v10, v1, 3, v10")
    A("s_lshl_b32 s3, s25, 7"); A("s_lshl_b32 s29, s23, 4"); A("s_add_u32 s3, s3, s29")
    A("s_lshl_b32 s29, s3, 1"); A("v_add_u32 v10, s29, v10")
    A("s_lshl_b32 s6, s3, 13"); A("s_lshl_b32 s29, s26, 10"); A("s_add_u32 s6, s6, s29")
    A("s_lshl_b32 s29, s24, 8"); A("s_add_u32 s6, s6, s29")
    A("s_lshl_b32 s7, s24, 3"); A("s_add_u32 s7, s7, s26"); A("s_lshl_b32 s7, s7, 20")
    A("s_lshl_b32 s29, s25, 18"); A("s_add_u32 s7, s7, s29")
    A("s_lshl_b32 s29, s23, 15"); A("s_add_u32 s7, s7, s29")
    A("s_mov_b32 s42, 0x20000"); A("s_mov_b32 s43, 0x20000")
    A("s_mov_b32 s34, 0x8000"); A("s_mov_b32 s35, 0x20000")
    A("s_mov_b32 s38, 0x8000"); A("s_mov_b32 s39, 0x20000")
    A("s_waitcnt lgkmcnt(0)")
    A("s_add_u32 s40, s14, s6"); A("s_addc_u32 s41, s15, 0")
    A("s_add_u32 s32, s10, s7"); A("s_addc_u32 s33, s11, 0")
    for e in range(4):
        A(f"buffer_load_dwordx4 v[{32+4*e}:{35+4*e}], v5, s[40:43], s{44+2*e} offen {ntw}")
    A("global_load_dwordx2 v[14:15], v10, s[8:9]")
    def kload(t, j):
        r = 128 + 16*t + 4*j
        A(f"buffer_load_dwordx4 v[{r}:{r+3}], v3, s[32:35], s{44+t} offen offset:{j*64} {nt}")
    def vreg(n):
        return 64 + 4*n if n < 16 else 128 + 4*(n-16)
    def vload(n):
        t, r = n // 4, n % 4
        A(f"buffer_load_dwordx4 v[{vreg(n)}:{vreg(n)+3}], v4, s[36:39], s{44+t} offen offset:{r*256} {nt}")
    for t in range(b1):
        for j in range(4): kload(t, j)
    A("s_add_u32 s36, s12, s7"); A("s_addc_u32 s37, s13, 0")
    A("s_lshl_b32 s3, s28, 7"); A("s_add_u32 s74, s20, s3"); A("s_addc_u32 s75, s21, 0")
    A("s_load_dword s22, s[74:75], 0")
    def rest():
        for t in range(b1, 8):
            for j in range(4): kload(t, j)
        for n in range(16): vload(n)
    A("s_cmp_ge_u32 s23, 4"); A("s_cbranch_scc0 L_setup")
    rest()
    LBL("L_setup")
    A("s_mov_b32 s30, 0x05040100"); A("s_mov_b32 s31, 0x07060302")
    A("s_lshl_b32 s3, s27, 16")
    A(f"s_add_u32 s29, s3, {WS_Q}"); A("s_add_u32 s56, s20, s29"); A("s_addc_u32 s57, s21, 0")
    A(f"s_add_u32 s29, s3, {WS_O}"); A("s_add_u32 s58, s20, s29"); A("s_addc_u32 s59, s21, 0")
    A("s_lshl_b32 s3, s27, 10")
    A(f"s_add_u32 s29, s3, {WS_ML}"); A("s_add_u32 s60, s20, s29"); A("s_addc_u32 s61, s21, 0")
    A("s_lshl_b32 s3, s28, 19")
    A(f"s_add_u32 s29, s3, {WS_OUT}"); A("s_add_u32 s64, s20, s29"); A("s_addc_u32 s65, s21, 0")
    A("s_mov_b32 s66, 0x80000"); A("s_mov_b32 s67, 0x20000")
    A("s_mov_b32 s68, 0x20000"); A("s_mov_b32 s69, 0x40000"); A("s_mov_b32 s70, 0x60000")
    cs = (128 ** -0.5) * math.log2(math.e)
    import struct
    A(f"s_mov_b32 s71, 0x{struct.unpack('<I', struct.pack('<f', cs))[0]:08x}")
    A("s_lshl_b32 s3, s26, 2"); A("s_add_u32 s3, s3, s24")
    A("s_lshl_b32 s62, s3, 14")
    A("s_lshl_b32 s3, s3, 17"); A("s_lshl_b32 s29, s23, 14"); A("s_add_u32 s3, s3, s29")
    A("s_lshl_b32 s29, s25, 8"); A("s_add_u32 s3, s3, s29")
    A("s_add_u32 s52, s16, s3"); A("s_addc_u32 s53, s17, 0"); A("s_mov_b32 s54, 0x4000"); A("s_mov_b32 s55, 0x20000")
    A("s_and_b32 s63, s23, 3")
    A("s_lshl_b32 s3, s24, 12"); A("s_lshl_b32 s29, s25, 10"); A("s_add_u32 s3, s3, s29")
    A("s_lshl_b32 s29, s63, 8"); A("s_add_u32 s3, s3, s29")
    A("v_lshlrev_b32 v6, 4, v2"); A("v_lshl_add_u32 v6, v1, 14, v6"); A("v_add_u32 v6, s3, v6")
    A("s_lshl_b32 s3, s24, 14"); A("s_lshl_b32 s29, s63, 12"); A("s_add_u32 s3, s3, s29")
    A("v_lshlrev_b32 v7, 4, v0"); A("v_add_u32 v7, s3, v7")
    A("v_lshlrev_b32 v8, 2, v0")
    A("s_lshl_b32 s3, s23, 11"); A("v_add_u32 v11, s3, v8")
    A("s_lshl_b32 s3, s63, 9"); A("v_add_u32 v12, s3, v8")
    A("v_lshlrev_b32 v5, 4, v2"); A("v_lshl_add_u32 v5, v1, 12, v5")
    A("s_cmp_ge_u32 s23, 4"); A("s_cbranch_scc1 L_w48")
    A(f"s_waitcnt vmcnt({4*b1})"); A("s_branch L_qproj")
    LBL("L_w48")
    A("s_waitcnt vmcnt(48)")
    LBL("L_qproj")
    STAMP()
    for j in range(8):
        sel = "s30" if j % 2 == 0 else "s31"
        for kk in range(2):
            A(f"v_perm_b32 v{48+2*j+kk}, v{32+4*(2*kk+1)+j//2}, v{32+4*(2*kk)+j//2}, {sel}")
    A("s_nop 1")
    def dq(j): return 16 + 4*j if j < 4 else 32 + 4*(j-4)
    for j in range(8):
        A(f"v_mfma_f32_16x16x16_bf16 v[{dq(j)}:{dq(j)+3}], v[14:15], v[{48+2*j}:{49+2*j}], 0")
    A("s_nop 7")
    for j in range(0, 8, 2):
        A(f"ds_write2st64_b32 v11, v{dq(j)}, v{dq(j+1)} offset0:{j} offset1:{j+1}")
    A("s_waitcnt lgkmcnt(0)")
    A("s_add_u32 s22, s22, 1")
    A("s_barrier")
    A("s_cmp_ge_u32 s23, 4"); A("s_cbranch_scc1 L_qready")
    def reduce_pairs(stride):
        for ww in range(8):
            A(f"ds_read2st64_b32 v[{16+2*ww}:{17+2*ww}], v12 offset0:{ww*stride} offset1:{ww*stride+1}")
        A("v_mov_b32 v33, s22"); A("v_mov_b32 v35, s22")
        A("s_waitcnt lgkmcnt(6)"); A("v_pk_add_f32 v[16:17], v[16:17], v[18:19]")
        A("s_waitcnt lgkmcnt(4)"); A("v_pk_add_f32 v[20:21], v[20:21], v[22:23]")
        A("s_waitcnt lgkmcnt(2)"); A("v_pk_add_f32 v[24:25], v[24:25], v[26:27]")
        A("v_pk_add_f32 v[16:17], v[16:17], v[20:21]")
        A("s_waitcnt lgkmcnt(0)"); A("v_pk_add_f32 v[28:29], v[28:29], v[30:31]")
        A("v_pk_add_f32 v[24:25], v[24:25], v[28:29]")
        A("v_add_f32 v32, v16, v24"); A("v_add_f32 v34, v17, v25")
    reduce_pairs(8)
    A("global_store_dwordx4 v6, v[32:35], s[56:57] sc1")
    STAMP()
    A(f"s_mov_b32 s29, {spin}")
    LBL("L_qpoll")
    for y in range(4):
        A(f"global_load_dwordx4 v[{16+4*y}:{19+4*y}], v7, s[56:57] offset:{y*1024} sc1")
    A("s_waitcnt vmcnt(0)")
    for y in range(4):
        A(f"v_cmpx_eq_u32 vcc, s22, v{17+4*y}"); A(f"v_cmpx_eq_u32 vcc, s22, v{19+4*y}")
    A("s_sub_u32 s29, s29, 1")
    A("s_cselect_b64 s[72:73], -1, exec")
    A("s_mov_b64 exec, -1")
    A("s_cmp_eq_u64 s[72:73], -1"); A("s_cbranch_scc0 L_qpoll")
    A("v_add_f32 v16, v16, v20"); A("v_add_f32 v18, v18, v22")
    A("v_add_f32 v24, v24, v28"); A("v_add_f32 v26, v26, v30")
    A("v_add_f32 v16, v16, v24"); A("v_add_f32 v18, v18, v26")
    A("v_lshlrev_b32 v13, 4, v2"); A("v_lshl_add_u32 v13, v1, 2, v13")
    A("s_lshl_b32 s3, s23, 8"); A("v_add_u32 v13, s3, v13")
    A("v_cvt_pk_bf16_f32 v16, v16, v18")
    A(f"ds_write_b32 v13, v16 offset:{QB}")
    rest()
    A("s_waitcnt lgkmcnt(0)")
    LBL("L_qready")
    A("s_barrier")
    STAMP()
    A("v_lshlrev_b32 v13, 8, v9"); A("v_lshl_add_u32 v13, v1, 4, v13")
    for j in range(4):
        A(f"ds_read_b128 v[{16+4*j}:{19+4*j}], v13 offset:{QB + j*64}")
    A("s_waitcnt lgkmcnt(0)")
    waits = [44, 44, 44, 44, 44, 44, 40, 36]
    for t in range(8):
        A(f"s_waitcnt vmcnt({waits[t]})")
        s = 32 + 4*t
        for j in range(4):
            r = 128 + 16*t + 4*j
            A(f"v_mfma_f32_16x16x32_bf16 v[{s}:{s+3}], v[{r}:{r+3}], v[{16+4*j}:{19+4*j}], " + ("0" if j == 0 else f"v[{s}:{s+3}]"))
        if t < 4:
            for n in range(16 + 4*t, 20 + 4*t): vload(n)
        if t == 4:
            for e in range(4):
                A(f"buffer_load_dwordx4 v[{192+4*e}:{195+4*e}], v5, s[52:55], 0 offen offset:{e*1024} {ntw}")
    STAMP()
    A("v_max3_f32 v10, v32, v33, v34")
    for i in range(35, 59, 2):
        A(f"v_max3_f32 v10, v10, v{i}, v{i+1}")
    A("v_lshlrev_b32 v13, 5, v9")
    A("s_lshl_b32 s3, s23, 2"); A("v_add_u32 v14, s3, v13")
    A("v_max3_f32 v10, v10, v59, v60"); A("v_max3_f32 v10, v10, v61, v62"); A("v_max_f32 v10, v10, v63")
    A("v_mov_b32 v15, v10"); A("s_nop 1")
    A("v_permlane16_swap_b32 v10, v15"); A("s_nop 1"); A("v_max_f32 v10, v10, v15")
    A("v_mov_b32 v15, v10"); A("s_nop 1")
    A("v_permlane32_swap_b32 v10, v15"); A("s_nop 1"); A("v_max_f32 v10, v10, v15")
    A(f"ds_write_b32 v14, v10 offset:{MX}")
    A("v_lshlrev_b32 v14, 5, v1")
    A("s_waitcnt lgkmcnt(0)")
    A("s_barrier")
    A(f"ds_read_b128 v[16:19], v13 offset:{MX}"); A(f"ds_read_b128 v[20:23], v13 offset:{MX+16}")
    A(f"ds_read_b128 v[24:27], v14 offset:{MX}"); A(f"ds_read_b128 v[28:31], v14 offset:{MX+16}")
    for i in range(4): A(f"v_mov_b32 v{252+i}, 0x3f803f80")
    A("s_waitcnt lgkmcnt(0)")
    A("v_max3_f32 v10, v16, v17, v18"); A("v_max3_f32 v10, v10, v19, v20"); A("v_max3_f32 v10, v10, v21, v22"); A("v_max_f32 v10, v10, v23")
    A("v_max3_f32 v15, v24, v25, v26"); A("v_max3_f32 v15, v15, v27, v28"); A("v_max3_f32 v15, v15, v29, v30"); A("v_max_f32 v15, v15, v31")
    A("v_mul_f32 v10, s71, v10"); A("v_mul_f32 v15, s71, v15")
    for i in range(32, 64): A(f"v_fma_f32 v{i}, v{i}, s71, -v10")
    for i in range(32, 64): A(f"v_exp_f32 v{i}, v{i}")
    A("s_nop 0")
    for i in range(16): A(f"v_cvt_pk_bf16_f32 v{16+i}, v{32+2*i}, v{33+2*i}")
    STAMP()
    for u in range(4):
        P = f"v[{16+4*u}:{19+4*u}]"
        A(f"v_mfma_f32_16x16x32_bf16 v[240:243], {P}, v[252:255], " + ("0" if u == 0 else "v[240:243]"))
        for kk in range(4):
            A(f"s_waitcnt vmcnt({4 + 31 - (8*u + 2*kk + 1)})")
            lo, hi = vreg(8*u + 2*kk), vreg(8*u + 2*kk + 1)
            seq = []
            for j in range(8):
                sel = "s30" if j % 2 == 0 else "s31"
                seq.append(f"v_perm_b32 v{32+4*j+kk}, v{hi+j//2}, v{lo+j//2}, {sel}")
            if kk < 3:
                for x in seq: A(x)
            else:
                def mf(j):
                    a = 208 + 4*j
                    A(f"v_mfma_f32_16x16x32_bf16 v[{a}:{a+3}], {P}, v[{32+4*j}:{35+4*j}], " + ("0" if u == 0 else f"v[{a}:{a+3}]"))
                A(seq[0]); A(seq[1]); A(seq[2])
                for j in range(8):
                    mf(j)
                    if j + 3 < 8: A(seq[j+3])
    STAMP()
    A("s_mul_i32 s3, s23, 2304"); A("v_add_u32 v11, s3, v8")
    A("ds_write_b32 v11, v240 offset:2048")
    A("ds_write2st64_b32 v11, v208, v212 offset0:0 offset1:1")
    A("ds_write2st64_b32 v11, v216, v220 offset0:2 offset1:3")
    A("s_nop 1")
    A("ds_write2st64_b32 v11, v224, v228 offset0:4 offset1:5")
    A("s_nop 2")
    A("ds_write2st64_b32 v11, v232, v236 offset0:6 offset1:7")
    A("s_waitcnt lgkmcnt(0)")
    A("s_barrier")
    A("s_cmp_ge_u32 s23, 4"); A("s_cbranch_scc1 L_notpub")
    reduce_pairs(9)
    A("global_store_dwordx4 v6, v[32:35], s[58:59] sc1")
    A("s_waitcnt vmcnt(1)")
    A("s_branch L_wo")
    LBL("L_notpub")
    A("s_cmp_eq_u32 s23, 4"); A("s_cbranch_scc0 L_nopub")
    for ww in range(0, 8, 2):
        A(f"ds_read2st64_b32 v[{16+ww}:{17+ww}], v8 offset0:{ww*9+8} offset1:{(ww+1)*9+8}")
    A("v_mov_b32 v32, v15"); A("v_mov_b32 v33, s22"); A("v_mov_b32 v35, s22")
    A("s_lshl_b32 s3, s24, 6"); A("s_lshl_b32 s29, s25, 4"); A("s_add_u32 s3, s3, s29")
    A("v_lshlrev_b32 v13, 8, v1"); A("v_add_u32 v13, s3, v13")
    A("v_cmp_eq_u32 vcc, 0, v2")
    A("s_waitcnt lgkmcnt(0)")
    A("v_add_f32 v16, v16, v17"); A("v_add_f32 v18, v18, v19"); A("v_add_f32 v20, v20, v21"); A("v_add_f32 v22, v22, v23")
    A("v_add_f32 v16, v16, v18"); A("v_add_f32 v20, v20, v22"); A("v_add_f32 v34, v16, v20")
    A("s_mov_b64 exec, vcc")
    A("global_store_dwordx4 v13, v[32:35], s[60:61] sc1")
    A("s_mov_b64 exec, -1")
    A("s_waitcnt vmcnt(1)")
    A("s_branch L_wo")
    LBL("L_nopub")
    A("s_waitcnt vmcnt(0)")
    LBL("L_wo")
    STAMP()
    for j in range(8):
        sel = "s30" if j % 2 == 0 else "s31"
        for kk in range(2):
            A(f"v_perm_b32 v{48+2*j+kk}, v{192+4*(2*kk+1)+j//2}, v{192+4*(2*kk)+j//2}, {sel}")
    A("s_lshr_b32 s3, s23, 1"); A("s_lshl_b32 s3, s3, 10"); A("s_and_b32 s29, s23, 1"); A("s_lshl_b32 s29, s29, 3"); A("s_add_u32 s3, s3, s29")
    A("v_lshlrev_b32 v13, 4, v0")
    A("v_add_u32 v14, s3, v13")
    for j in range(8):
        A(f"ds_write_b64 v14, v[{48+2*j}:{49+2*j}] offset:{WOT + j*4096}")
    A("s_cmp_ge_u32 s23, 4"); A("s_cbranch_scc0 L_oready")
    A("s_lshl_b32 s3, s24, 8"); A("s_lshl_b32 s29, s63, 6"); A("s_add_u32 s3, s3, s29")
    A("v_and_b32 v14, 3, v0"); A("v_lshlrev_b32 v14, 4, v14"); A("v_add_u32 v14, s3, v14")
    A("v_and_b32 v10, 1, v2"); A("v_lshlrev_b32 v10, 5, v10")
    A("v_lshl_add_u32 v10, v9, 6, v10")
    A("v_lshrrev_b32 v11, 1, v1"); A("v_lshl_add_u32 v10, v11, 4, v10")
    A("v_bfe_u32 v11, v2, 1, 1"); A("v_lshl_add_u32 v10, v11, 3, v10")
    A("v_and_b32 v11, 1, v1"); A("v_lshl_add_u32 v10, v11, 2, v10")
    A("s_lshl_b32 s3, s63, 8"); A("v_add_u32 v10, s3, v10")
    A(f"s_mov_b32 s29, {spin}")
    LBL("L_opoll")
    A("global_load_dwordx4 v[32:35], v14, s[60:61] sc1")
    for y in range(4):
        A(f"global_load_dwordx4 v[{16+4*y}:{19+4*y}], v7, s[58:59] offset:{y*1024} sc1")
    A("s_waitcnt vmcnt(0)")
    A("v_cmpx_eq_u32 vcc, s22, v33"); A("v_cmpx_eq_u32 vcc, s22, v35")
    for y in range(4):
        A(f"v_cmpx_eq_u32 vcc, s22, v{17+4*y}"); A(f"v_cmpx_eq_u32 vcc, s22, v{19+4*y}")
    A("s_sub_u32 s29, s29, 1")
    A("s_cselect_b64 s[72:73], -1, exec")
    A("s_mov_b64 exec, -1")
    A("s_cmp_eq_u64 s[72:73], -1"); A("s_cbranch_scc0 L_opoll")
    D = "row_mask:0xf bank_mask:0xf"
    A(f"v_max_f32_dpp v36, v32, v32 quad_perm:[1,0,3,2] {D}")
    A("s_nop 1")
    A(f"v_max_f32_dpp v36, v36, v36 quad_perm:[2,3,0,1] {D}")
    A("v_sub_f32 v36, v32, v36"); A("v_exp_f32 v36, v36")
    A("s_nop 0")
    A("v_mul_f32 v37, v36, v34")
    A("s_nop 1")
    A(f"v_add_f32_dpp v37, v37, v37 quad_perm:[1,0,3,2] {D}")
    A("s_nop 1")
    A(f"v_add_f32_dpp v37, v37, v37 quad_perm:[2,3,0,1] {D}")
    A("v_rcp_f32 v37, v37")
    A("s_nop 0")
    A("v_mul_f32 v36, v36, v37")
    A("s_nop 1")
    A(f"v_mul_f32_dpp v38, v36, v16 quad_perm:[0,0,0,0] {D}"); A(f"v_mul_f32_dpp v39, v36, v18 quad_perm:[0,0,0,0] {D}")
    for y in range(1, 4):
        A(f"v_fmac_f32_dpp v38, v36, v{16+4*y} quad_perm:[{y},{y},{y},{y}] {D}")
        A(f"v_fmac_f32_dpp v39, v36, v{18+4*y} quad_perm:[{y},{y},{y},{y}] {D}")
    A("v_cvt_pk_bf16_f32 v38, v38, v39")
    A(f"ds_write_b32 v10, v38 offset:{OB}")
    LBL("L_oready")
    A("v_and_b32 v11, 3, v2"); A("v_lshlrev_b32 v11, 8, v11"); A("v_lshl_add_u32 v11, v1, 4, v11")
    A("s_lshl_b32 s3, s23, 12"); A("v_add_u32 v12, s3, v13")
    A("s_lshl_b32 s3, s25, 12"); A("s_add_u32 s3, s3, s62"); A("s_lshl_b32 s29, s23, 9"); A("s_add_u32 s3, s3, s29")
    A("v_add_u32 v13, s3, v13")
    A("v_cmp_eq_u32 s[72:73], 1, v1")
    A("v_mov_b32 v5, s22"); A("v_mov_b32 v7, s22")
    A("s_waitcnt lgkmcnt(0)")
    A("s_barrier")
    STAMP()
    for ks in range(4):
        A(f"ds_read_b128 v[{16+4*ks}:{19+4*ks}], v11 offset:{OB + ks*64}")
        A(f"ds_read_b128 v[{32+4*ks}:{35+4*ks}], v12 offset:{WOT + ks*1024}")
    for ks in range(4):
        A(f"s_waitcnt lgkmcnt({6 - 2*ks})")
        A(f"v_mfma_f32_16x16x32_bf16 v[48:51], v[{16+4*ks}:{19+4*ks}], v[{32+4*ks}:{35+4*ks}], " + ("0" if ks == 0 else "v[48:51]"))
    A("s_nop 7")
    A("v_cndmask_b32 v4, v48, v50, s[72:73]"); A("v_cndmask_b32 v6, v49, v51, s[72:73]")
    A("s_mov_b32 exec_hi, 0")
    A("buffer_store_dwordx4 v[4:7], v13, s[64:67], 0 offen sc1")
    A("s_mov_b64 exec, -1")
    A("s_cmp_lg_u32 s23, 0"); A("s_cbranch_scc1 L_end")
    A("s_and_b32 s3, s2, 127")
    A("v_lshrrev_b32 v10, 3, v0"); A("v_and_b32 v11, 7, v0")
    A("v_lshlrev_b32 v10, 14, v10"); A("v_lshl_add_u32 v10, v11, 4, v10")
    A("s_lshl_b32 s29, s3, 7"); A("v_add_u32 v10, s29, v10")
    A("s_bfe_u32 s4, s3, 0x10001"); A("s_lshl_b32 s4, s4, 12")
    A("s_lshl_b32 s5, s28, 10"); A("s_add_u32 s4, s4, s5")
    A("s_lshr_b32 s5, s3, 5"); A("s_lshl_b32 s5, s5, 8"); A("s_add_u32 s4, s4, s5")
    A("s_and_b32 s5, s3, 1"); A("s_lshl_b32 s5, s5, 7"); A("s_add_u32 s4, s4, s5")
    A("s_bfe_u32 s5, s3, 0x30002"); A("s_lshl_b32 s5, s5, 1"); A("s_add_u32 s4, s4, s5")
    A("v_lshlrev_b32 v11, 4, v11"); A("v_add_u32 v11, s4, v11")
    A(f"s_mov_b32 s29, {spin}")
    LBL("L_fpoll")
    for m in range(4):
        so = "0" if m == 0 else f"s{67+m}"
        A(f"buffer_load_dwordx4 v[{16+4*m}:{19+4*m}], v10, s[64:67], {so} offen sc1")
    A("s_waitcnt vmcnt(0)")
    for y in range(4):
        A(f"v_cmpx_eq_u32 vcc, s22, v{17+4*y}"); A(f"v_cmpx_eq_u32 vcc, s22, v{19+4*y}")
    A("s_sub_u32 s29, s29, 1")
    A("s_cselect_b64 s[72:73], -1, exec")
    A("s_mov_b64 exec, -1")
    A("s_cmp_eq_u64 s[72:73], -1"); A("s_cbranch_scc0 L_fpoll")
    A("v_add_f32 v16, v16, v20"); A("v_add_f32 v18, v18, v22")
    A("v_add_f32 v24, v24, v28"); A("v_add_f32 v26, v26, v30")
    A("v_add_f32 v16, v16, v24"); A("v_add_f32 v18, v18, v26")
    A("s_nop 1")
    A(f"v_add_f32_dpp v16, v16, v16 row_ror:8 {D}"); A(f"v_add_f32_dpp v18, v18, v18 row_ror:8 {D}")
    A("v_mov_b32 v17, v16"); A("v_mov_b32 v19, v18"); A("s_nop 1")
    A("v_permlane16_swap_b32 v16, v17"); A("v_permlane16_swap_b32 v18, v19"); A("s_nop 1")
    A("v_add_f32 v16, v16, v17"); A("v_add_f32 v18, v18, v19")
    A("v_mov_b32 v17, v16"); A("v_mov_b32 v19, v18"); A("s_nop 1")
    A("v_permlane32_swap_b32 v16, v17"); A("v_permlane32_swap_b32 v18, v19"); A("s_nop 1")
    A("v_add_f32 v16, v16, v17"); A("v_add_f32 v18, v18, v19")
    A("v_cvt_pk_bf16_f32 v16, v16, v18")
    A("s_mov_b64 exec, 0xff")
    A("global_store_short v11, v16, s[18:19]")
    A("global_store_short_d16_hi v11, v16, s[18:19] offset:2048")
    A("s_mov_b64 exec, 1")
    A("s_cmp_lg_u32 s3, 0"); A("s_cbranch_scc1 L_noep")
    A("v_mov_b32 v12, 0")
    A("global_store_dword v12, v5, s[74:75]")
    LBL("L_noep")
    if stamps:
        STAMP()
        A("s_waitcnt lgkmcnt(0)")
        n = nst[0]
        A(f"s_mul_i32 s3, s2, {n*8}"); A(f"s_add_u32 s3, s3, {STAMP_OFF}")
        A("s_add_u32 s20, s20, s3"); A("s_addc_u32 s21, s21, 0")
        A("v_mov_b32 v12, 0")
        for i in range(n):
            A(f"v_mov_b32 v16, s{76+2*i}"); A(f"v_mov_b32 v17, s{77+2*i}")
            A(f"global_store_dwordx2 v12, v[16:17], s[20:21] offset:{8*i}")
            A("s_nop 1")
    LBL("L_end")
    A("s_endpgm")
    L.append('.section .rodata,"a"'); L.append(".p2align 6"); L.append(f".amdhsa_kernel {NAME}_kernel")
    for s in ["next_free_vgpr 256", "next_free_sgpr 100", "accum_offset 256", "group_segment_fixed_size 0", "kernarg_size 104",
              "user_sgpr_count 2", "user_sgpr_kernarg_segment_ptr 1", "system_sgpr_workgroup_id_x 1"]:
        L.append("  .amdhsa_" + s)
    L.append(".end_amdhsa_kernel")
    return "\n".join(L) + "\n"

if __name__ == "__main__":
    open("k_nt.s", "w").write(gen())
    open("k_nt_st.s", "w").write(gen(stamps=True))
    open("k_def.s", "w").write(gen(nt="", ntw=""))
    open("k_def_st.s", "w").write(gen(nt="", ntw="", stamps=True))
```

```python
import math, struct, sys
NAME = "concat_heads__gqa_block_cached__gqa_block_cached__decode"
HDR = open("cdna_kernels/" + NAME + ".s.ref").read().split("; Override launch")[0]

ORED = 0
QB   = 0x4000
MX   = 0x4400
FLG  = 0x4580
OB   = 0x4800
WOT  = 0x8000
LDS_BYTES = 0x10000
WS_ID, WS_Q, WS_CT, WS_O, WS_OUT, WS_E = 0x8000, 0x10000, 0x40000, 0x100000, 0x200000, 0x300000
STAMP_OFF = 0x8000000
D = "row_mask:0xf bank_mask:0xf"

DOC = """; One workgroup per CU, 8 waves. wg = head*8 + x, x = (Y>>1)*4 + branch*2 + (Y&1), head = kvh*4 + X.
;  - hand-offs are 16-byte granules tagged with (launch epoch word in d_ws) + 1; every wait is bounded."""

def gen(stamps=False, spin=2000000, k0=2, wl=4, balA=9, pad=0):
    L = []
    def A(s, c=None): L.append("    " + s + (f"    ; {c}" if c else ""))
    def C(s): L.append("    ; " + s)
    def LBL(s): L.append(s + ":")
    def STAMP(i):
        if stamps: A(f"s_memrealtime s[{76+2*i}:{77+2*i}]")
    def KV(t): return 112 + 16*t
    def SEL(j): return 's30' if j % 2 == 0 else 's31'
    END = "L_dump" if stamps else "L_end"
    L.append(HDR.rstrip("\n"))
    L.append(f"; @launch grid=(256,1,1) block=(512,1,1) lds={LDS_BYTES}")
    L.append(DOC)
    L.append('.amdgcn_target "amdgcn-amd-amdhsa--gfx950"')
    L.append(".text"); L.append(f".globl {NAME}_kernel"); L.append(".p2align 8")
    L.append(f".type {NAME}_kernel,@function"); LBL(f"{NAME}_kernel")
    STAMP(0)
    if stamps:
        A("s_waitcnt lgkmcnt(0)")
        for i in range(1, 10): A(f"s_mov_b64 s[{76+2*i}:{77+2*i}], s[76:77]")
    if pad: A("s_memrealtime s[96:97]")
    A("s_cmp_ge_u32 s2, 256"); A("s_cbranch_scc1 L_end")
    A("s_bfe_u32 s28, s2, 0x10001", "branch")
    A("s_mul_i32 s3, s28, 40")
    A("s_add_u32 s4, s0, s3"); A("s_addc_u32 s5, s1, 0")
    A("s_load_dwordx8 s[8:15], s[4:5], 0", "x, k, v, wq")
    A("s_load_dwordx2 s[20:21], s[0:1], 96", "ws")
    A("s_load_dwordx2 s[16:17], s[4:5], 32", "wo")
    A("s_load_dwordx2 s[18:19], s[0:1], 80", "out")
    A("v_lshrrev_b32 v9, 6, v0"); A("v_and_b32 v0, 63, v0", "lane")
    A("v_lshrrev_b32 v1, 4, v0", "g = lane >> 4")
    A("v_readfirstlane_b32 s23, v9", "wave")
    A("v_and_b32 v2, 15, v0", "c = lane & 15")
    A("s_bfe_u32 s24, s2, 0x20003", "X")
    A("s_bfe_u32 s25, s2, 0x10002"); A("s_lshl_b32 s25, s25, 1"); A("s_and_b32 s3, s2, 1"); A("s_or_b32 s25, s25, s3", "Y")
    A("s_lshr_b32 s26, s2, 5", "kvh")
    A("s_lshr_b32 s54, s2, 3", "head")
    A("v_lshrrev_b32 v9, 2, v2", "c >> 2")
    A("v_lshlrev_b32 v4, 4, v2")
    A("s_cmp_lg_u32 s23, 0"); A("s_cbranch_scc1 L_common")
    C("wave 0: wq rows ks*128 + (c>>2)*32 + g*8 + e, columns kvh*512 + (Y*4+X)*32 + (c&3)*8")
    A("v_and_b32 v11, 3, v2")
    A("v_lshlrev_b32 v5, 18, v9"); A("v_lshl_add_u32 v5, v1, 16, v5"); A("v_lshl_add_u32 v5, v11, 4, v5")
    A("v_lshlrev_b32 v10, 10, v11"); A("v_lshl_add_u32 v10, v9, 6, v10"); A("v_lshl_add_u32 v10, v1, 4, v10")
    A("s_lshl_b32 s62, s25, 2"); A("s_add_u32 s62, s62, s24", "q column tile")
    A("s_lshl_b32 s6, s26, 10"); A("s_lshl_b32 s29, s62, 6"); A("s_add_u32 s6, s6, s29")
    A("s_sub_u32 s42, 0x400000, s6"); A("s_mov_b32 s43, 0x20000")
    for r in (12, 13, 14, 15): A(f"v_mov_b32 v{r}, 0")
    A(f"ds_write_b128 v13, v[12:15] offset:{FLG}")
    A("s_waitcnt lgkmcnt(0)")
    A("s_add_u32 s40, s14, s6"); A("s_addc_u32 s41, s15, 0")
    for ks in range(4):
        for e in range(8):
            r = 112 + 32*ks + 4*e
            o = (ks*128 + e) * 8192
            if o: A(f"s_mov_b32 s3, {o}")
            A(f"buffer_load_dwordx4 v[{r}:{r+3}], v5, s[40:43], {'s3' if o else '0'} offen")
        A(f"global_load_dwordx4 v[{16+4*ks}:{19+4*ks}], v10, s[8:9] offset:{ks*256}")
    LBL("L_common")
    A("v_and_b32 v3, 7, v2"); A("v_lshlrev_b32 v3, 8, v3"); A("v_lshl_add_u32 v3, v1, 4, v3")
    A("v_lshrrev_b32 v8, 3, v2"); A("v_lshl_add_u32 v3, v8, 6, v3", "K: key c&7, bytes (c>>3)*64 + g*16 of a 128-byte half row")
    A("v_lshl_add_u32 v4, v1, 10, v4", "V: key 4g (+r), bytes c*16")
    A("s_lshl_b32 s7, s24, 3"); A("s_add_u32 s7, s7, s26"); A("s_lshl_b32 s7, s7, 20", "sequence (X, kvh)")
    C("fixed tiles: quarter (X+Y)&3, 8-tile region (wave+head)&7, tiles 0..6 (tile 7 of every region is in the shared pool)")
    A("s_add_u32 s44, s25, s24"); A("s_and_b32 s44, s44, 3"); A("s_lshl_b32 s44, s44, 3")
    A("s_add_u32 s29, s54, s23"); A("s_and_b32 s29, s29, 7"); A("s_add_u32 s44, s44, s29"); A("s_lshl_b32 s44, s44, 15")
    for t in range(1, 7): A(f"s_add_u32 s{44+t}, s44, {t*4096}")
    A("s_mov_b32 s34, 0x100000"); A("s_mov_b32 s35, 0x20000")
    A("s_waitcnt lgkmcnt(0)")
    A("s_add_u32 s32, s10, s7"); A("s_addc_u32 s33, s11, 0")
    A("s_lshl_b32 s3, s28, 7"); A(f"s_add_u32 s3, s3, {WS_E}"); A("s_add_u32 s74, s20, s3"); A("s_addc_u32 s75, s21, 0")
    A("s_load_dword s22, s[74:75], 0", "epoch word")
    A("s_barrier", "wq loads are in the queue first; LDS flags cleared")
    def kload(t):
        for j in range(4):
            r = KV(t) + 4*j
            A(f"buffer_load_dwordx4 v[{r}:{r+3}], v3, s[32:35], s{44+t} offen offset:{(j//2)*2048 + (j%2)*128} nt")
    def vload(t):
        for j in range(4):
            r = KV(t) + 4*j
            A(f"buffer_load_dwordx4 v[{r}:{r+3}], v4, s[36:39], s{44+t} offen offset:{j*256} nt")
    A("s_cmp_eq_u32 s23, 0"); A("s_cbranch_scc1 L_setup")
    for t in range(k0): kload(t)
    LBL("L_setup")
    A("s_add_u32 s36, s12, s7"); A("s_addc_u32 s37, s13, 0"); A("s_mov_b32 s38, 0x100000"); A("s_mov_b32 s39, 0x20000")
    A("s_mov_b32 s30, 0x05040100"); A("s_mov_b32 s31, 0x07060302")
    A("s_lshl_b32 s27, s28, 3"); A("s_add_u32 s27, s27, s26", "group")
    A("s_lshl_b32 s3, s27, 16")
    A(f"s_add_u32 s29, s3, {WS_O}"); A("s_add_u32 s60, s20, s29"); A("s_addc_u32 s61, s21, 0")
    A("s_lshl_b32 s3, s28, 19")
    A(f"s_add_u32 s29, s3, {WS_OUT}"); A("s_add_u32 s64, s20, s29"); A("s_addc_u32 s65, s21, 0")
    A("s_mov_b32 s66, 0x80000"); A("s_mov_b32 s67, 0x20000")
    A("s_mov_b32 s68, 0x20000"); A("s_mov_b32 s69, 0x40000"); A("s_mov_b32 s70, 0x60000")
    cs = (128 ** -0.5) * math.log2(math.e)
    A(f"s_mov_b32 s71, 0x{struct.unpack('<I', struct.pack('<f', cs))[0]:08x}", "log2(e) / sqrt(128)")
    A("s_and_b32 s63, s23, 3")
    C("arrival counters [group][b][y], one line each: wave 4+y adds to (X, y) and watches (y, Y)")
    A("s_lshl_b32 s3, s27, 4"); A("s_lshl_b32 s4, s24, 2"); A("s_add_u32 s4, s4, s3"); A("s_add_u32 s4, s4, s63")
    A("s_lshl_b32 s4, s4, 7"); A(f"s_add_u32 s55, s4, {WS_CT}"); A("s_add_u32 s58, s20, s55"); A("s_addc_u32 s59, s21, 0")
    A("s_lshl_b32 s4, s63, 2"); A("s_add_u32 s4, s4, s3"); A("s_add_u32 s4, s4, s25")
    A("s_lshl_b32 s4, s4, 7"); A(f"s_add_u32 s4, s4, {WS_CT}"); A("s_add_u32 s10, s20, s4"); A("s_addc_u32 s11, s21, 0")
    C("o granules [group][head'][b][split][64 x 16 B]: v6 publish, v7 collect")
    A("s_lshl_b32 s3, s24, 12"); A("s_lshl_b32 s29, s25, 10"); A("s_add_u32 s3, s3, s29")
    A("s_lshl_b32 s29, s63, 8"); A("s_add_u32 s3, s3, s29")
    A("v_lshlrev_b32 v6, 4, v2"); A("v_lshl_add_u32 v6, v1, 14, v6"); A("v_add_u32 v6, s3, v6")
    A("s_lshl_b32 s3, s24, 14"); A("s_lshl_b32 s29, s63, 12"); A("s_add_u32 s3, s3, s29")
    A("v_lshlrev_b32 v7, 4, v0"); A("v_add_u32 v7, s3, v7")
    A("v_lshlrev_b32 v8, 2, v0")
    C("wo rows head*128 + (wave&3)*32 ..., columns Y*128 ...")
    A("s_lshl_b32 s3, s54, 17"); A("s_lshl_b32 s29, s63, 15"); A("s_add_u32 s3, s3, s29")
    A("s_lshl_b32 s29, s25, 8"); A("s_add_u32 s3, s3, s29")
    A("s_add_u32 s12, s16, s3"); A("s_addc_u32 s13, s17, 0"); A("s_mov_b32 s14, 0x8000"); A("s_mov_b32 s15, 0x20000")
    A("s_lshl_b32 s16, s63, 13"); A(f"s_add_u32 s16, s16, {WOT}"); A("s_mov_b32 s17, 1")
    for i in range(4): A(f"v_mov_b32 v{108+i}, 0x3f803f80")
    A("v_mov_b32 v13, 0")
    A("s_waitcnt lgkmcnt(0)")
    A("s_add_u32 s22, s22, 1", "tag = epoch + 1")
    A("s_cmp_eq_u32 s23, 0"); A("s_cbranch_scc1 L_service")
    A("s_barrier", "wave 0 has issued its hand-off store: open the load stream")
    for t in range(k0, 7): kload(t)
    STAMP(1)
    A("s_branch L_qwait")
    LBL("L_service")
    A("s_getreg_b32 s7, hwreg(HW_REG_XCC_ID, 0, 4)")
    A("v_cmp_eq_u32 s[4:5], v1, v9", "result lanes whose row group matches their column group")
    A("v_lshlrev_b32 v11, 4, v2")
    A("v_and_b32 v12, 1, v0"); A("v_lshlrev_b32 v12, 10, v12"); A("v_bfe_u32 v14, v0, 1, 2"); A("v_lshl_add_u32 v12, v14, 4, v12")
    A("v_bfe_u32 v14, v0, 3, 2"); A("v_lshl_add_u32 v12, v14, 2, v12")
    A("v_and_b32 v15, 7, v0"); A("v_lshlrev_b32 v15, 4, v15"); A("v_lshl_add_u32 v15, v14, 11, v15")
    A("s_lshl_b32 s6, s27, 13"); A(f"s_add_u32 s6, s6, {WS_Q}")
    A("s_lshl_b32 s3, s62, 7"); A("s_add_u32 s3, s3, s6"); A("v_add_u32 v15, s3, v15", "q granules [group][b][tile][8]")
    A("s_lshl_b32 s3, s24, 11"); A("s_add_u32 s3, s3, s6"); A("v_lshlrev_b32 v104, 4, v0"); A("v_add_u32 v14, s3, v104")
    C("XCD ids [branch*4+Y][head]: lanes 0-31 read this column set, 32-35 the splits of this sequence, 36+ its counters")
    A("s_lshl_b32 s3, s28, 11"); A(f"s_add_u32 s3, s3, {WS_ID}")
    A("s_lshl_b32 s6, s25, 9"); A("s_add_u32 s6, s6, s3"); A("s_lshl_b32 s8, s54, 4")
    A("v_add_u32 v104, s6, v104")
    A("s_add_u32 s3, s3, s8"); A("v_and_b32 v106, 3, v0"); A("v_lshlrev_b32 v105, 9, v106"); A("v_add_u32 v105, s3, v105")
    A("v_cmp_gt_u32 vcc, 32, v0")
    A("s_add_u32 s6, s6, s8")
    A("v_lshlrev_b32 v106, 7, v106"); A("v_add_u32 v106, s55, v106")
    A("v_cndmask_b32 v104, v105, v104, vcc")
    A("v_cmp_gt_u32 vcc, 36, v0")
    A("s_lshl_b32 s3, s25, 7"); A("s_add_u32 s3, s3, s55", "counter (X, Y) is cleared by this workgroup")
    A("v_cndmask_b32 v104, v106, v104, vcc")
    A("v_writelane_b32 v15, s6, 32"); A("v_writelane_b32 v15, s3, 33")
    for ks in range(4):
        for kk in range(4):
            A(f"s_waitcnt vmcnt({35 - (9*ks + 2*kk + 1) - (1 if kk == 3 else 0)})")
            lo, hi = 112 + 32*ks + 8*kk, 112 + 32*ks + 8*kk + 4
            for j in range(8):
                A(f"v_perm_b32 v{36+4*j+kk}, v{hi+j//2}, v{lo+j//2}, {SEL(j)}")
        for j in range(8):
            a = 72 + 4*j
            A(f"v_mfma_f32_16x16x32_bf16 v[{a}:{a+3}], v[{16+4*ks}:{19+4*ks}], v[{36+4*j}:{39+4*j}], " + ("0" if ks == 0 else f"v[{a}:{a+3}]"))
    A("v_mov_b32 v33, s22"); A("v_mov_b32 v35, s22")
    A("s_mov_b64 exec, s[4:5]")
    for j in range(8):
        A(f"ds_write_b128 v11, v[{72+4*j}:{75+4*j}] offset:{j*256}")
    A("s_mov_b64 exec, -1")
    for jj in range(4):
        A(f"ds_read2_b32 v[{16+4*jj}:{17+4*jj}], v12 offset0:{jj*64} offset1:{jj*64+16}")
        A(f"ds_read2_b32 v[{18+4*jj}:{19+4*jj}], v12 offset0:{jj*64+32} offset1:{jj*64+48}")
    A("s_waitcnt lgkmcnt(0)")
    for jj in range(4):
        A(f"v_pk_add_f32 v[{16+4*jj}:{17+4*jj}], v[{16+4*jj}:{17+4*jj}], v[{18+4*jj}:{19+4*jj}]")
    for jj in range(4):
        A(f"v_add_f32 v{16+4*jj}, v{16+4*jj}, v{17+4*jj}")
    A("v_cvt_pk_bf16_f32 v32, v16, v20"); A("v_cvt_pk_bf16_f32 v34, v24, v28")
    A("v_writelane_b32 v32, s7, 32"); A("v_writelane_b32 v34, s7, 32")
    A("v_writelane_b32 v32, 0, 33"); A("v_writelane_b32 v34, 0, 33")
    A("s_mov_b32 exec_hi, 3")
    A("global_store_dwordx4 v15, v[32:35], s[20:21] sc1")
    A("s_mov_b64 exec, -1")
    A("s_barrier")
    A("v_lshlrev_b32 v11, 3, v0"); A(f"v_add_u32 v11, {QB}, v11")
    A(f"s_mov_b32 s29, {spin}")
    A("s_waitcnt vmcnt(0)")
    STAMP(2)
    LBL("L_qpoll")
    A("global_load_dwordx4 v[16:19], v14, s[20:21] sc1")
    A("global_load_dwordx4 v[20:23], v14, s[20:21] offset:1024 sc1")
    A("global_load_dwordx4 v[24:27], v104, s[20:21] sc1")
    A("s_waitcnt vmcnt(0)")
    for r in (17, 19, 21, 23, 25, 27): A(f"v_cmpx_eq_u32 vcc, s22, v{r}")
    A("s_sub_u32 s29, s29, 1")
    A("s_cselect_b64 s[72:73], -1, exec", "budget exhausted: stop waiting")
    A("s_mov_b64 exec, -1")
    A("s_cmp_eq_u64 s[72:73], -1"); A("s_cbranch_scc0 L_qpoll")
    A("ds_write2_b32 v11, v16, v18 offset0:0 offset1:1")
    A("ds_write2_b32 v11, v20, v22 offset0:128 offset1:129")
    for y in range(4): A(f"v_readlane_b32 s{40+y}, v24, {32+y}")
    A("v_cmp_ne_u32 vcc, s7, v24")
    C(f"pool tiles per split: 8 + {balA} * (mean parity - own XCD parity), cumulative rounding c1..c3")
    for y in range(4): A(f"s_and_b32 s{40+y}, s{40+y}, 1")
    A("s_add_u32 s41, s41, s40"); A("s_add_u32 s42, s42, s41"); A("s_add_u32 s43, s43, s42")
    A(f"s_mul_i32 s3, s43, {balA}"); A("s_add_u32 s3, s3, 32", "4 * (8 + A * mean)")
    for k in range(3):
        A(f"s_mul_i32 s4, s3, {k+1}"); A(f"s_mul_i32 s{40+k}, s{40+k}, {4*balA}"); A(f"s_sub_u32 s{40+k}, s4, s{40+k}")
        A(f"s_add_u32 s{40+k}, s{40+k}, 2"); A(f"s_lshr_b32 s{40+k}, s{40+k}, 2")
    assert 8 + 0.75 * balA <= 15.5
    A("s_lshl_b32 s41, s41, 8"); A("s_lshl_b32 s42, s42, 16"); A("s_or_b32 s40, s40, s41"); A("s_or_b32 s40, s40, s42")
    A("s_or_b32 s41, s40, 0x20000000"); A("s_lshl_b32 s40, s40, 8")
    A("s_lshl_b32 s3, s25, 3"); A("s_lshr_b32 s40, s40, s3"); A("s_lshr_b32 s41, s41, s3")
    A("s_and_b32 s40, s40, 0xff"); A("s_and_b32 s41, s41, 0xff"); A("s_sub_u32 s41, s41, s40")
    A("s_lshl_b32 s40, s40, 16"); A("s_lshl_b32 s41, s41, 8"); A("s_or_b32 s40, s40, s41")
    A("s_cmp_eq_u32 vcc_lo, 0"); A("s_cselect_b32 s3, 3, 1"); A("s_or_b32 s40, s40, s3", "first pool tile << 16 | count << 8 | same-XCD << 1 | 1")
    A("v_mov_b32 v10, s40")
    A(f"ds_write_b32 v13, v10 offset:{FLG}")
    for t in range(7): kload(t)
    LBL("L_qwait")
    A(f"ds_read_b32 v10, v13 offset:{FLG}")
    A("s_waitcnt lgkmcnt(0)")
    A("v_readfirstlane_b32 s53, v10")
    A("s_cmp_lg_u32 s53, 0"); A("s_cbranch_scc1 L_qready")
    A("s_sleep 2"); A("s_branch L_qwait")
    LBL("L_qready")
    STAMP(3)
    A("v_lshlrev_b32 v10, 8, v9"); A("v_lshl_add_u32 v10, v1, 4, v10")
    A("v_and_b32 v11, 1, v2"); A("v_lshl_add_u32 v10, v11, 6, v10", "q: head c>>2, dim half c&1")
    for j in range(2):
        A(f"ds_read_b128 v[{16+4*j}:{19+4*j}], v10 offset:{QB + j*128}")
    A("v_and_b32 v10, 3, v2"); A("v_cmp_eq_u32 s[56:57], 0, v10")
    A("s_lshl_b32 s3, s23, 3")
    A("v_lshlrev_b32 v11, 6, v9"); A("v_add_u32 v11, s3, v11")
    A("v_lshlrev_b32 v12, 6, v1"); A("v_add_u32 v14, s3, v12")
    A("s_lshl_b32 s3, s23, 11"); A("v_add_u32 v15, s3, v8")
    A("s_bfe_u32 s3, s53, 0x80010"); A("s_add_u32 s3, s3, s23")
    A("s_lshl_b32 s3, s3, 3"); A("s_add_u32 s3, s3, 7"); A("s_lshl_b32 s51, s3, 12"); A("s_add_u32 s52, s51, 0x40000")
    A("s_bfe_u32 s3, s53, 0x80008")
    A("s_cmp_le_u32 s3, s23"); A("s_cbranch_scc1 L_body7")
    A("s_add_u32 s4, s23, 8"); A("s_cmp_gt_u32 s3, s4"); A("s_cbranch_scc1 L_body9")
    def body(n):
        LBL(f"L_body{n}")
        for t in range(7, n): kload(t)
        A("s_waitcnt lgkmcnt(0)")
        def fold(t):
            d = 72 + 8*(t % 2); s = 36 + 4*t
            for r in range(4): A(f"v_permlane32_swap_b32 v{d+r}, v{d+4+r}")
            A("s_nop 0")
            for r in range(4): A(f"v_add_f32_dpp v{s+r}, v{d+4+r}, v{d+r} quad_perm:[1,0,3,2] {D}")
        C("scores; each consumed K tile is replaced by the V tile of the same keys")
        for t in range(n):
            A(f"s_waitcnt vmcnt({4*(n-1)})")
            d = 72 + 8*(t % 2)
            for z in range(2):
                for j in range(2):
                    r = KV(t) + 8*z + 4*j
                    A(f"v_mfma_f32_16x16x32_bf16 v[{d+4*z}:{d+4*z+3}], v[{r}:{r+3}], v[{16+4*j}:{19+4*j}], " + ("0" if j == 0 else f"v[{d+4*z}:{d+4*z+3}]"))
            vload(t)
            if t > 0: fold(t - 1)
        A("s_nop 0")
        fold(n - 1)
        STAMP(4)
        C("softmax numerators against this wave's max")
        regs = list(range(36, 36 + 4*n))
        A(f"v_max3_f32 v10, v{regs[0]}, v{regs[1]}, v{regs[2]}")
        for i in range(3, len(regs) - 1, 2):
            A(f"v_max3_f32 v10, v10, v{regs[i]}, v{regs[i+1]}")
        A(f"v_max_f32 v10, v10, v{regs[-1]}")
        A("v_mov_b32 v5, v10"); A("s_nop 1")
        A("v_permlane16_swap_b32 v10, v5"); A("v_max_f32 v10, v10, v5")
        A("v_mov_b32 v5, v10"); A("s_nop 1")
        A("v_permlane32_swap_b32 v10, v5"); A("v_max_f32 v10, v10, v5")
        A("v_mul_f32 v10, s71, v10")
        for r in regs: A(f"v_fma_f32 v{r}, v{r}, s71, -v10")
        for r in regs: A(f"v_exp_f32 v{r}, v{r}")
        A("s_mov_b64 exec, s[56:57]")
        A(f"ds_write_b32 v11, v10 offset:{MX}")
        A("s_mov_b64 exec, -1")
        for i in range(2*n): A(f"v_cvt_pk_bf16_f32 v{16+i}, v{36+2*i}, v{37+2*i}")
        A("s_nop 1")
        nb = (n + 1) // 2
        for u in range(nb):
            c = "0" if u == 0 else "v[104:107]"
            if 2*u + 1 < n: A(f"v_mfma_f32_16x16x32_bf16 v[104:107], v[{16+4*u}:{19+4*u}], v[108:111], {c}")
            else:
                A("s_nop 5")
                A(f"v_mfma_f32_16x16x16_bf16 v[104:107], v[{16+4*u}:{17+4*u}], v[108:109], {c}")
        A("v_mov_b32 v5, 1")
        A("s_nop 6")
        A(f"ds_write_b32 v14, v104 offset:{MX+4}")
        A("s_mov_b64 exec, 1")
        A(f"ds_add_u32 v13, v5 offset:{FLG+4}")
        A("s_mov_b64 exec, -1")
        STAMP(5)
        C("P @ V (V transposed in registers)")
        for u in range(nb):
            full = 2*u + 1 < n
            nk = 4 if full else 2
            P = f"v[{16+4*u}:{16+4*u+nk-1}]"
            for kk in range(nk):
                m = 8*u + 2*kk + 1
                A(f"s_waitcnt vmcnt({4*n - 1 - m})")
                lo, hi = 112 + 4*(m-1), 112 + 4*m
                seq = [f"v_perm_b32 v{36+4*j+kk}, v{hi+j//2}, v{lo+j//2}, {SEL(j)}" for j in range(8)]
                if kk < nk - 1:
                    for x in seq: A(x)
                else:
                    A(seq[0]); A(seq[1]); A(seq[2])
                    for j in range(8):
                        a = 72 + 4*j
                        c = "0" if u == 0 else f"v[{a}:{a+3}]"
                        if full: A(f"v_mfma_f32_16x16x32_bf16 v[{a}:{a+3}], {P}, v[{36+4*j}:{39+4*j}], {c}")
                        else:    A(f"v_mfma_f32_16x16x16_bf16 v[{a}:{a+3}], {P}, v[{36+4*j}:{37+4*j}], {c}")
                        if j + 3 < 8: A(seq[j+3])
    body(8); A("s_branch L_pvdone")
    body(9); A("s_branch L_pvdone")
    body(7)
    LBL("L_pvdone")
    STAMP(6)
    A("s_nop 0")
    A("ds_write2st64_b32 v15, v72, v76 offset0:0 offset1:1")
    A("ds_write2st64_b32 v15, v80, v84 offset0:2 offset1:3")
    A("s_nop 2")
    A("ds_write2st64_b32 v15, v88, v92 offset0:4 offset1:5")
    A("s_nop 1")
    A("ds_write2st64_b32 v15, v96, v100 offset0:6 offset1:7")
    A("s_cmp_ge_u32 s23, 4"); A("s_cbranch_scc1 L_late")
    C("waves 0-3. wo goes straight to LDS: chunk c of row 4i+g is fetched from chunk c ^ 2h, h = g | (i&2)<<1")
    A("v_lshlrev_b32 v3, 1, v1"); A("v_xor_b32 v3, v3, v2"); A("v_lshlrev_b32 v3, 4, v3"); A("v_lshl_add_u32 v3, v1, 10, v3")
    A("v_xor_b32 v4, 0x80, v3")
    A("s_lshl_b32 s3, s23, 9"); A("v_add_u32 v11, s3, v8")
    C("transposing B reads: row 8g + r, 32-byte group j ^ (r | (g&1)<<2), 8-byte piece c&3 (r = c>>2)")
    A("v_and_b32 v15, 1, v1"); A("v_lshl_add_u32 v15, v15, 2, v9"); A("v_xor_b32 v15, s23, v15")
    A("v_lshl_add_u32 v14, v1, 3, v9"); A("v_lshlrev_b32 v14, 8, v14"); A("v_lshl_add_u32 v14, v15, 5, v14")
    A("v_and_b32 v15, 3, v2"); A("v_lshl_add_u32 v14, v15, 3, v14")
    A("v_xor_b32 v98, 0x80, v14")
    A("v_mul_u32_u24 v15, 320, v15"); A("v_lshl_add_u32 v15, v1, 4, v15")
    C("output partials [branch][head][Y][j][batch pair][16] x 16 B")
    A("s_lshl_b32 s3, s54, 14"); A("s_lshl_b32 s29, s25, 12"); A("s_add_u32 s3, s3, s29")
    A("s_lshl_b32 s29, s23, 10"); A("s_add_u32 s7, s3, s29"); A("s_lshl_b32 s29, s23, 9"); A("s_add_u32 s3, s3, s29")
    A("v_lshlrev_b32 v97, 4, v0"); A("v_add_u32 v99, s3, v97")
    A("v_cmp_eq_u32 s[56:57], 1, v1")
    A("v_mov_b32 v5, 1")
    A("s_lshl_b32 s6, s25, 5"); A("s_add_u32 s6, s6, s54", "final reducer id")
    A("v_lshrrev_b32 v8, 3, v0"); A("v_and_b32 v9, 7, v0")
    A("v_lshlrev_b32 v8, 14, v8"); A("v_lshl_add_u32 v8, v9, 4, v8")
    A("s_lshl_b32 s29, s6, 7"); A("v_add_u32 v8, s29, v8")
    A("s_bfe_u32 s4, s6, 0x10001"); A("s_lshl_b32 s4, s4, 12")
    A("s_lshl_b32 s5, s28, 10"); A("s_add_u32 s4, s4, s5")
    A("s_lshl_b32 s5, s25, 8"); A("s_add_u32 s4, s4, s5")
    A("s_and_b32 s5, s6, 1"); A("s_lshl_b32 s5, s5, 4"); A("s_add_u32 s4, s4, s5")
    A("s_bfe_u32 s5, s6, 0x30002"); A("s_lshl_b32 s5, s5, 5"); A("s_add_u32 s4, s4, s5")
    A("v_lshlrev_b32 v9, 1, v9"); A("v_add_u32 v9, s4, v9")
    A("v_lshrrev_b32 v7, 5, v0"); A("v_lshl_add_u32 v9, v7, 11, v9")
    A(f"s_mov_b32 s29, {spin}")
    LBL("L_cnt")
    A(f"ds_read_b32 v10, v13 offset:{FLG+4}")
    A("s_waitcnt lgkmcnt(0)")
    A("v_readfirstlane_b32 s4, v10")
    A("s_cmp_ge_u32 s4, 8"); A("s_cbranch_scc1 L_cntok")
    A("s_sleep 2"); A("s_branch L_cnt")
    LBL("L_cntok")
    for i in range(4): A(f"ds_read_b128 v[{16+4*i}:{19+4*i}], v12 offset:{MX + 16*i}")
    def woloads(lo, hi):
        for i in range(lo, hi):
            A(f"s_add_u32 m0, s16, {i*1024}")
            A(f"s_mov_b32 s3, {i*4096}")
            A(f"buffer_load_dwordx4 {'v4' if i & 2 else 'v3'}, s[12:15], s3 offen nt lds")
    woloads(0, 8 - wl)
    for r in (81, 83, 85, 87, 33): A(f"v_mov_b32 v{r}, s22")
    A("s_waitcnt lgkmcnt(0)")
    A("v_max3_f32 v44, v16, v18, v20"); A("v_max3_f32 v44, v44, v22, v24"); A("v_max3_f32 v44, v44, v26, v28"); A("v_max_f32 v44, v44, v30")
    for w in range(8): A(f"v_sub_f32 v{36+w}, v{16+2*w}, v44")
    for w in range(8): A(f"v_exp_f32 v{36+w}, v{36+w}")
    A("s_nop 0")
    A("v_mul_f32 v46, v36, v17")
    for w in range(1, 8): A(f"v_fmac_f32 v46, v{36+w}, v{17+2*w}")
    A("v_log_f32 v45, v46"); A("v_rcp_f32 v46, v46")
    A("s_nop 0")
    A("v_add_f32 v35, v44, v45", "log2-sum-exp of this split")
    for w in range(8): A(f"v_mul_f32 v{36+w}, v{36+w}, v46")
    A("v_xor_b32 v35, s22, v35")
    A("s_barrier", "all partial o are in LDS")
    STAMP(7)
    for ww in range(8): A(f"ds_read2st64_b32 v[{16+2*ww}:{17+2*ww}], v11 offset0:{ww*8} offset1:{ww*8+1}")
    A("s_waitcnt lgkmcnt(7)"); A("v_mul_f32 v32, v36, v16"); A("v_mul_f32 v34, v36, v17")
    for ww in range(1, 8):
        A(f"s_waitcnt lgkmcnt({7 - ww})")
        A(f"v_fmac_f32 v32, v{36+ww}, v{16+2*ww}"); A(f"v_fmac_f32 v34, v{36+ww}, v{17+2*ww}")
    A("global_store_dwordx4 v6, v[32:35], s[60:61] sc1")
    woloads(8 - wl, 8)
    A("buffer_load_dword v148, v97, s[64:67], s7 offen sc1", "pull the lines written below into L2 (values unused)")
    A("global_load_dword v149, v13, s[18:19]", "warm the d_out translation (value unused)")
    A("s_waitcnt vmcnt(2)")
    A("s_mov_b64 exec, 1"); A(f"ds_add_u32 v13, v5 offset:{FLG+8}"); A("s_mov_b64 exec, -1")
    LBL("L_bf")
    A(f"ds_read_b32 v16, v13 offset:{FLG+8}")
    A("s_waitcnt lgkmcnt(0)")
    A("v_readfirstlane_b32 s4, v16")
    A("s_cmp_ge_u32 s4, 4"); A("s_cbranch_scc0 L_bf")
    for z in range(2):
        for ks in range(4):
            for hf in range(2):
                r = 48 + 16*z + 4*ks + 2*hf
                A(f"ds_read_b64_tr_b16 v[{r}:{r+1}], {'v98' if z else 'v14'} offset:{WOT + ks*8192 + hf*1024}")
        A("s_waitcnt lgkmcnt(0)")
    A("s_barrier", "combined o is in LDS")
    STAMP(8)
    for ks in range(4):
        A(f"ds_read_b128 v[{16+4*ks}:{19+4*ks}], v15 offset:{OB + ks*64}")
    for ks in range(4):
        A(f"s_waitcnt lgkmcnt({3 - ks})")
        for z in range(2):
            d = 32 + 4*z
            A(f"v_mfma_f32_16x16x32_bf16 v[{d}:{d+3}], v[{16+4*ks}:{19+4*ks}], v[{48+16*z+4*ks}:{51+16*z+4*ks}], " + ("0" if ks == 0 else f"v[{d}:{d+3}]"))
    A("s_bitcmp1_b32 s53, 1")
    A("s_nop 5")
    A("v_cndmask_b32 v80, v32, v34, s[56:57]"); A("v_cndmask_b32 v82, v33, v35, s[56:57]")
    A("v_cndmask_b32 v84, v36, v38, s[56:57]"); A("v_cndmask_b32 v86, v37, v39, s[56:57]")
    A("s_mov_b32 exec_hi, 0")
    A("s_cbranch_scc1 L_ostl")
    A("buffer_store_dwordx4 v[80:83], v99, s[64:67], 0 offen sc1")
    A("buffer_store_dwordx4 v[84:87], v99, s[64:67], 0 offen offset:2048 sc1")
    A("s_branch L_ostd")
    LBL("L_ostl")
    A("buffer_store_dwordx4 v[80:83], v99, s[64:67], 0 offen", "all 32 readers reported this XCD: L2 is enough")
    A("buffer_store_dwordx4 v[84:87], v99, s[64:67], 0 offen offset:2048")
    LBL("L_ostd")
    A("s_cmp_eq_u32 s23, 0"); A("s_cbranch_scc1 L_final")
    A(f"s_branch {END}")
    LBL("L_late")
    A("s_waitcnt lgkmcnt(0)")
    A("s_barrier")
    A("s_atomic_add s17, s[58:59], 0", "hint only: the tags decide")
    STAMP(7)
    A("v_lshlrev_b32 v10, 4, v2"); A("v_lshl_add_u32 v10, v1, 2, v10")
    A("s_mul_i32 s3, s63, 320"); A("v_add_u32 v10, s3, v10")
    A(f"s_mov_b32 s29, {spin}")
    LBL("L_sg")
    A("s_load_dwordx2 s[4:5], s[10:11], 0 glc")
    A("s_waitcnt lgkmcnt(0)")
    A("s_cmp_eq_u32 s5, s22"); A("s_cselect_b32 s4, s4, 0")
    A("s_cmp_ge_u32 s4, 4"); A("s_cbranch_scc1 L_sgok")
    A("s_sub_u32 s29, s29, 1"); A("s_cbranch_scc0 L_sg")
    A("s_mov_b32 s29, 0")
    LBL("L_sgok")
    def maskpoll(name, loads, verify):
        for y in range(4): A(loads[y])
        LBL(name)
        A("s_waitcnt vmcnt(0)")
        for x in verify: A(x)
        A("s_cmp_eq_u64 exec, -1")
        A("s_mov_b64 exec, -1")
        A(f"s_cbranch_scc1 {name}_ok")
        for y in range(4): A(f"v_cmp_ne_u32 s[{44+2*y}:{45+2*y}], s22, v{17+4*y}")
        A("s_or_b64 s[72:73], s[44:45], s[46:47]"); A("s_or_b64 s[4:5], s[48:49], s[50:51]")
        A("s_or_b64 s[72:73], s[72:73], s[4:5]")
        A(f"s_cbranch_scc1 {name}_r")
        for y in range(4): A(f"s_mov_b64 s[{44+2*y}:{45+2*y}], -1")
        LBL(f"{name}_r")
        A("s_sub_u32 s29, s29, 1"); A(f"s_cbranch_scc1 {name}_ok")
        for y in range(4):
            A(f"s_mov_b64 exec, s[{44+2*y}:{45+2*y}]")
            A(f"s_cbranch_execz {name}_s{y}")
            A(loads[y])
            LBL(f"{name}_s{y}")
        A("s_mov_b64 exec, -1")
        A(f"s_branch {name}")
        LBL(f"{name}_ok")
    maskpoll("L_opoll", [f"global_load_dwordx4 v[{16+4*y}:{19+4*y}], v7, s[60:61] offset:{y*1024} sc1" for y in range(4)],
             [f"v_mov_b32_dpp v{32+y}, v{19+4*y} row_ror:1 {D}" for y in range(4)] + [f"v_cmpx_eq_u32 vcc, s22, v{17+4*y}" for y in range(4)] +
             [f"v_cmpx_eq_u32 vcc, v{32+y}, v{19+4*y}" for y in range(4)])
    C("combine the four splits")
    for y in range(4): A(f"v_xor_b32 v{19+4*y}, s22, v{19+4*y}")
    A("v_max3_f32 v36, v19, v23, v27"); A("v_max_f32 v36, v36, v31")
    for y in range(4): A(f"v_sub_f32 v{32+y}, v{19+4*y}, v36")
    for y in range(4): A(f"v_exp_f32 v{32+y}, v{32+y}")
    A("s_nop 0")
    A("v_add_f32 v36, v32, v33"); A("v_add_f32 v37, v34, v35")
    A("v_mul_f32 v38, v32, v16"); A("v_add_f32 v36, v36, v37"); A("v_mul_f32 v39, v32, v18")
    A("v_rcp_f32 v36, v36")
    for y in range(1, 4):
        A(f"v_fmac_f32 v38, v{32+y}, v{16+4*y}"); A(f"v_fmac_f32 v39, v{32+y}, v{18+4*y}")
    A("v_mul_f32 v38, v38, v36"); A("v_mul_f32 v39, v39, v36")
    A("v_cvt_pk_bf16_f32 v38, v38, v39")
    A(f"ds_write_b32 v10, v38 offset:{OB}")
    A("s_waitcnt lgkmcnt(0)")
    A("s_barrier")
    STAMP(8)
    A(f"s_branch {END}")
    LBL("L_final")
    A("s_mov_b64 exec, -1")
    maskpoll("L_fpoll", [f"buffer_load_dwordx4 v[{16+4*m}:{19+4*m}], v8, s[64:67], {'0' if m == 0 else 's%d' % (67+m)} offen sc1" for m in range(4)],
             [f"v_cmpx_eq_u32 vcc, s22, v{17+2*y}" for y in range(8)])
    A("v_add_f32 v16, v16, v20"); A("v_add_f32 v18, v18, v22")
    A("v_add_f32 v24, v24, v28"); A("v_add_f32 v26, v26, v30")
    A("v_add_f32 v16, v16, v24"); A("v_add_f32 v18, v18, v26")
    A("s_nop 1")
    A("v_permlane32_swap_b32 v16, v18")
    A("v_add_f32 v16, v16, v18")
    A("s_nop 1")
    A(f"v_add_f32_dpp v16, v16, v16 row_ror:8 {D}")
    A("v_mov_b32 v17, v16"); A("s_nop 1")
    A("v_permlane16_swap_b32 v16, v17")
    A("v_add_f32 v16, v16, v17")
    A("s_mov_b32 exec_lo, 0xff"); A("s_mov_b32 exec_hi, 0xff")
    A("v_cvt_pk_bf16_f32 v16, v16, v16")
    A("global_store_short v9, v16, s[18:19]")
    A("s_mov_b64 exec, 1")
    A("s_cmp_lg_u32 s6, 0"); A("s_cbranch_scc1 L_noep")
    A("global_store_dword v13, v81, s[74:75]", "every workgroup of this branch has read the epoch word by now")
    LBL("L_noep")
    if pad:
        A(f"s_add_u32 s96, s96, {pad*100}")
        LBL("L_pad")
        A("s_memrealtime s[98:99]"); A("s_waitcnt lgkmcnt(0)")
        A("s_sub_u32 s98, s98, s96"); A("s_cmp_lt_i32 s98, 0"); A("s_cbranch_scc1 L_pad")
    if stamps:
        LBL("L_dump")
        STAMP(9)
        A("s_mov_b64 exec, 1")
        A("s_waitcnt lgkmcnt(0)")
        A("s_lshl_b32 s3, s2, 3"); A("s_add_u32 s3, s3, s23")
        A(f"s_mul_i32 s3, s3, 96"); A(f"s_add_u32 s3, s3, {STAMP_OFF}")
        A("s_add_u32 s20, s20, s3"); A("s_addc_u32 s21, s21, 0")
        A("s_getreg_b32 s96, hwreg(HW_REG_XCC_ID)"); A("s_getreg_b32 s97, hwreg(HW_REG_HW_ID)")
        A("v_mov_b32 v12, 0")
        for i in range(11):
            A(f"v_mov_b32 v16, s{76+2*i}"); A(f"v_mov_b32 v17, s{77+2*i}")
            A(f"global_store_dwordx2 v12, v[16:17], s[20:21] offset:{8*i}")
            A("s_nop 1")
    LBL("L_end")
    A("s_endpgm")
    L.append('.section .rodata,"a"'); L.append(".p2align 6"); L.append(f".amdhsa_kernel {NAME}_kernel")
    for s in ["next_free_vgpr 256", f"next_free_sgpr {100 if (stamps or pad) else 76}", "accum_offset 256", "group_segment_fixed_size 0", "kernarg_size 104",
              "user_sgpr_count 2", "user_sgpr_kernarg_segment_ptr 1", "system_sgpr_workgroup_id_x 1"]:
        L.append("  .amdhsa_" + s)
    L.append(".end_amdhsa_kernel")
    return "\n".join(L) + "\n"

if __name__ == "__main__":
    open("fin.s", "w").write(gen())
    open("fin_st.s", "w").write(gen(stamps=True))
```

```python
import math, struct, sys
NAME = "concat_heads__gqa_block_cached__gqa_block_cached__decode"
HDR = open("cdna_kernels/" + NAME + ".s.ref").read().split("; Override launch")[0]

ORED = 0
QB   = 0x4000
MX   = 0x4400
FLG  = 0x4580
OB   = 0x4800
WOT  = 0x8000
LDS_BYTES = 0x10000
WS_ID, WS_Q, WS_CT, WS_O, WS_OUT, WS_E = 0x8000, 0x10000, 0x40000, 0x100000, 0x200000, 0x300000
STAMP_OFF = 0x8000000
D = "row_mask:0xf bank_mask:0xf"

DOC = """; One workgroup per CU, 8 waves. wg = head*8 + x, x = (Y>>1)*4 + branch*2 + (Y&1), head = kvh*4 + X.
;  - hand-offs are 16-byte granules tagged with (launch epoch word in d_ws) + 1; every wait is bounded."""

def gen(stamps=False, spin=2000000, k0=2, wl=4, balA=9, pad=0, f4=1, presum=1, tst=0, th=0, asl=4):
    L = []
    def A(s, c=None): L.append("    " + s + (f"    ; {c}" if c else ""))
    def C(s): L.append("    ; " + s)
    def LBL(s): L.append(s + ":")
    def STAMP(i):
        if stamps: A(f"s_memrealtime s[{76+2*i}:{77+2*i}]")
    def KV(t): return 112 + 16*t
    def SEL(j): return 's30' if j % 2 == 0 else 's31'
    END = "L_dump" if stamps else "L_end"
    L.append(HDR.rstrip("\n"))
    L.append(f"; @launch grid=(256,1,1) block=(512,1,1) lds={LDS_BYTES}")
    L.append(DOC)
    L.append('.amdgcn_target "amdgcn-amd-amdhsa--gfx950"')
    L.append(".text"); L.append(f".globl {NAME}_kernel"); L.append(".p2align 8")
    L.append(f".type {NAME}_kernel,@function"); LBL(f"{NAME}_kernel")
    STAMP(0)
    if stamps:
        A("s_waitcnt lgkmcnt(0)")
        for i in range(1, 10): A(f"s_mov_b64 s[{76+2*i}:{77+2*i}], s[76:77]")
    if pad: A("s_memrealtime s[96:97]")
    A("s_cmp_ge_u32 s2, 256"); A("s_cbranch_scc1 L_end")
    A("s_bfe_u32 s28, s2, 0x10001", "branch")
    A("s_mul_i32 s3, s28, 40")
    A("s_add_u32 s4, s0, s3"); A("s_addc_u32 s5, s1, 0")
    A("s_load_dwordx8 s[8:15], s[4:5], 0", "x, k, v, wq")
    A("s_load_dwordx2 s[20:21], s[0:1], 96", "ws")
    A("s_load_dwordx2 s[16:17], s[4:5], 32", "wo")
    A("s_load_dwordx2 s[18:19], s[0:1], 80", "out")
    A("v_lshrrev_b32 v9, 6, v0"); A("v_and_b32 v0, 63, v0", "lane")
    A("v_lshrrev_b32 v1, 4, v0", "g = lane >> 4")
    A("v_readfirstlane_b32 s23, v9", "wave")
    A("v_and_b32 v2, 15, v0", "c = lane & 15")
    A("s_bfe_u32 s24, s2, 0x20003", "X")
    A("s_bfe_u32 s25, s2, 0x10002"); A("s_lshl_b32 s25, s25, 1"); A("s_and_b32 s3, s2, 1"); A("s_or_b32 s25, s25, s3", "Y")
    A("s_lshr_b32 s26, s2, 5", "kvh")
    A("s_lshr_b32 s54, s2, 3", "head")
    A("v_lshrrev_b32 v9, 2, v2", "c >> 2")
    A("v_lshlrev_b32 v4, 4, v2")
    A("s_cmp_lg_u32 s23, 0"); A("s_cbranch_scc1 L_common")
    C("wave 0: wq rows ks*128 + (c>>2)*32 + g*8 + e, columns kvh*512 + (Y*4+X)*32 + (c&3)*8")
    A("v_and_b32 v11, 3, v2")
    A("v_lshlrev_b32 v5, 18, v9"); A("v_lshl_add_u32 v5, v1, 16, v5"); A("v_lshl_add_u32 v5, v11, 4, v5")
    A("v_lshlrev_b32 v10, 10, v11"); A("v_lshl_add_u32 v10, v9, 6, v10"); A("v_lshl_add_u32 v10, v1, 4, v10")
    A("s_lshl_b32 s62, s25, 2"); A("s_add_u32 s62, s62, s24", "q column tile")
    A("s_lshl_b32 s6, s26, 10"); A("s_lshl_b32 s29, s62, 6"); A("s_add_u32 s6, s6, s29")
    A("s_sub_u32 s42, 0x400000, s6"); A("s_mov_b32 s43, 0x20000")
    for r in (12, 13, 14, 15): A(f"v_mov_b32 v{r}, 0")
    A(f"ds_write_b128 v13, v[12:15] offset:{FLG}")
    A("s_waitcnt lgkmcnt(0)")
    A("s_add_u32 s40, s14, s6"); A("s_addc_u32 s41, s15, 0")
    for ks in range(4):
        for e in range(8):
            r = 112 + 32*ks + 4*e
            o = (ks*128 + e) * 8192
            if o: A(f"s_mov_b32 s3, {o}")
            A(f"buffer_load_dwordx4 v[{r}:{r+3}], v5, s[40:43], {'s3' if o else '0'} offen")
        A(f"global_load_dwordx4 v[{16+4*ks}:{19+4*ks}], v10, s[8:9] offset:{ks*256}")
    LBL("L_common")
    A("v_and_b32 v3, 7, v2"); A("v_lshlrev_b32 v3, 8, v3"); A("v_lshl_add_u32 v3, v1, 4, v3")
    A("v_lshrrev_b32 v8, 3, v2"); A("v_lshl_add_u32 v3, v8, 6, v3", "K: key c&7, bytes (c>>3)*64 + g*16 of a 128-byte half row")
    A("v_lshl_add_u32 v4, v1, 10, v4", "V: key 4g (+r), bytes c*16")
    A("s_lshl_b32 s7, s24, 3"); A("s_add_u32 s7, s7, s26"); A("s_lshl_b32 s7, s7, 20", "sequence (X, kvh)")
    C("fixed tiles: quarter (X+Y)&3, 8-tile region (wave+head)&7, tiles 0..6 (tile 7 of every region is in the shared pool)")
    A("s_add_u32 s44, s25, s24"); A("s_and_b32 s44, s44, 3"); A("s_lshl_b32 s44, s44, 3")
    A("s_add_u32 s29, s54, s23"); A("s_and_b32 s29, s29, 7"); A("s_add_u32 s44, s44, s29"); A("s_lshl_b32 s44, s44, 15")
    for t in range(1, 7): A(f"s_add_u32 s{44+t}, s44, {t*4096}")
    A("s_mov_b32 s34, 0x100000"); A("s_mov_b32 s35, 0x20000")
    A("s_waitcnt lgkmcnt(0)")
    A("s_add_u32 s32, s10, s7"); A("s_addc_u32 s33, s11, 0")
    A("s_lshl_b32 s3, s28, 7"); A(f"s_add_u32 s3, s3, {WS_E}"); A("s_add_u32 s74, s20, s3"); A("s_addc_u32 s75, s21, 0")
    A("s_load_dword s22, s[74:75], 0", "epoch word")
    A("s_barrier", "wq loads are in the queue first; LDS flags cleared")
    def kload(t):
        for j in range(4):
            r = KV(t) + 4*j
            A(f"buffer_load_dwordx4 v[{r}:{r+3}], v3, s[32:35], s{44+t} offen offset:{(j//2)*2048 + (j%2)*128} nt")
    def vload(t):
        for j in range(4):
            r = KV(t) + 4*j
            A(f"buffer_load_dwordx4 v[{r}:{r+3}], v4, s[36:39], s{44+t} offen offset:{j*256} nt")
    A("s_cmp_eq_u32 s23, 0"); A("s_cbranch_scc1 L_setup")
    for t in range(k0): kload(t)
    LBL("L_setup")
    A("s_add_u32 s36, s12, s7"); A("s_addc_u32 s37, s13, 0"); A("s_mov_b32 s38, 0x100000"); A("s_mov_b32 s39, 0x20000")
    A("s_mov_b32 s30, 0x05040100"); A("s_mov_b32 s31, 0x07060302")
    A("s_lshl_b32 s27, s28, 3"); A("s_add_u32 s27, s27, s26", "group")
    A("s_lshl_b32 s3, s27, 16")
    A(f"s_add_u32 s29, s3, {WS_O}"); A("s_add_u32 s60, s20, s29"); A("s_addc_u32 s61, s21, 0")
    A("s_lshl_b32 s3, s28, 19")
    A(f"s_add_u32 s29, s3, {WS_OUT}"); A("s_add_u32 s64, s20, s29"); A("s_addc_u32 s65, s21, 0")
    A("s_mov_b32 s66, 0x80000"); A("s_mov_b32 s67, 0x20000")
    A("s_mov_b32 s68, 0x20000"); A("s_mov_b32 s69, 0x40000"); A("s_mov_b32 s70, 0x60000")
    cs = (128 ** -0.5) * math.log2(math.e)
    A(f"s_mov_b32 s71, 0x{struct.unpack('<I', struct.pack('<f', cs))[0]:08x}", "log2(e) / sqrt(128)")
    A("s_and_b32 s63, s23, 3")
    C("arrival counters [group][b][y], one line each: wave 4+y adds to (X, y) and watches (y, Y)")
    A("s_lshl_b32 s3, s27, 4"); A("s_lshl_b32 s4, s24, 2"); A("s_add_u32 s4, s4, s3"); A("s_add_u32 s4, s4, s63")
    A("s_lshl_b32 s4, s4, 7"); A(f"s_add_u32 s55, s4, {WS_CT}"); A("s_add_u32 s58, s20, s55"); A("s_addc_u32 s59, s21, 0")
    A("s_lshl_b32 s4, s63, 2"); A("s_add_u32 s4, s4, s3"); A("s_add_u32 s4, s4, s25")
    A("s_lshl_b32 s4, s4, 7"); A(f"s_add_u32 s4, s4, {WS_CT}"); A("s_add_u32 s10, s20, s4"); A("s_addc_u32 s11, s21, 0")
    C("o granules [group][head'][b][split][64 x 16 B]: v6 publish, v7 collect")
    A("s_lshl_b32 s3, s24, 12"); A("s_lshl_b32 s29, s25, 10"); A("s_add_u32 s3, s3, s29")
    A("s_lshl_b32 s29, s63, 8"); A("s_add_u32 s3, s3, s29")
    A("v_lshlrev_b32 v6, 4, v2"); A("v_lshl_add_u32 v6, v1, 14, v6"); A("v_add_u32 v6, s3, v6")
    A("s_lshl_b32 s3, s24, 14"); A("s_lshl_b32 s29, s63, 12"); A("s_add_u32 s3, s3, s29")
    A("v_lshlrev_b32 v7, 4, v0"); A("v_add_u32 v7, s3, v7")
    A("v_lshlrev_b32 v8, 2, v0")
    C("wo rows head*128 + (wave&3)*32 ..., columns Y*128 ...")
    A("s_lshl_b32 s3, s54, 17"); A("s_lshl_b32 s29, s63, 15"); A("s_add_u32 s3, s3, s29")
    A("s_lshl_b32 s29, s25, 8"); A("s_add_u32 s3, s3, s29")
    A("s_add_u32 s12, s16, s3"); A("s_addc_u32 s13, s17, 0"); A("s_mov_b32 s14, 0x8000"); A("s_mov_b32 s15, 0x20000")
    A("s_lshl_b32 s16, s63, 13"); A(f"s_add_u32 s16, s16, {WOT}"); A("s_mov_b32 s17, 1")
    for i in range(4): A(f"v_mov_b32 v{108+i}, 0x3f803f80")
    A("v_mov_b32 v13, 0")
    A("s_waitcnt lgkmcnt(0)")
    A("s_add_u32 s22, s22, 1", "tag = epoch + 1")
    A("s_cmp_eq_u32 s23, 0"); A("s_cbranch_scc1 L_service")
    A("s_barrier", "wave 0 has issued its hand-off store: open the load stream")
    for t in range(k0, 7): kload(t)
    STAMP(1)
    A("s_branch L_qwait")
    LBL("L_service")
    A("s_getreg_b32 s7, hwreg(HW_REG_XCC_ID, 0, 4)")
    A("v_cmp_eq_u32 s[4:5], v1, v9", "result lanes whose row group matches their column group")
    A("v_lshlrev_b32 v11, 4, v2")
    A("v_and_b32 v12, 1, v0"); A("v_lshlrev_b32 v12, 10, v12"); A("v_bfe_u32 v14, v0, 1, 2"); A("v_lshl_add_u32 v12, v14, 4, v12")
    A("v_bfe_u32 v14, v0, 3, 2"); A("v_lshl_add_u32 v12, v14, 2, v12")
    A("v_and_b32 v15, 7, v0"); A("v_lshlrev_b32 v15, 4, v15"); A("v_lshl_add_u32 v15, v14, 11, v15")
    A("s_lshl_b32 s6, s27, 13"); A(f"s_add_u32 s6, s6, {WS_Q}")
    A("s_lshl_b32 s3, s62, 7"); A("s_add_u32 s3, s3, s6"); A("v_add_u32 v15, s3, v15", "q granules [group][b][tile][8]")
    A("s_lshl_b32 s3, s24, 11"); A("s_add_u32 s3, s3, s6"); A("v_lshlrev_b32 v104, 4, v0"); A("v_add_u32 v14, s3, v104")
    C("XCD ids [branch*4+Y][head]: lanes 0-31 read this column set, 32-35 the splits of this sequence, 36+ its counters")
    A("s_lshl_b32 s3, s28, 11"); A(f"s_add_u32 s3, s3, {WS_ID}")
    A("s_lshl_b32 s6, s25, 9"); A("s_add_u32 s6, s6, s3"); A("s_lshl_b32 s8, s54, 4")
    A("v_add_u32 v104, s6, v104")
    A("s_add_u32 s3, s3, s8"); A("v_and_b32 v106, 3, v0"); A("v_lshlrev_b32 v105, 9, v106"); A("v_add_u32 v105, s3, v105")
    A("v_cmp_gt_u32 vcc, 32, v0")
    A("s_add_u32 s6, s6, s8")
    A("v_lshlrev_b32 v106, 7, v106"); A("v_add_u32 v106, s55, v106")
    A("v_cndmask_b32 v104, v105, v104, vcc")
    A("v_cmp_gt_u32 vcc, 36, v0")
    A("s_lshl_b32 s3, s25, 7"); A("s_add_u32 s3, s3, s55", "counter (X, Y) is cleared by this workgroup")
    A("v_cndmask_b32 v104, v106, v104, vcc")
    A("v_writelane_b32 v15, s6, 32"); A("v_writelane_b32 v15, s3, 33")
    for ks in range(4):
        for kk in range(4):
            A(f"s_waitcnt vmcnt({35 - (9*ks + 2*kk + 1) - (1 if kk == 3 else 0)})")
            lo, hi = 112 + 32*ks + 8*kk, 112 + 32*ks + 8*kk + 4
            for j in range(8):
                A(f"v_perm_b32 v{36+4*j+kk}, v{hi+j//2}, v{lo+j//2}, {SEL(j)}")
        for j in range(8):
            a = 72 + 4*j
            A(f"v_mfma_f32_16x16x32_bf16 v[{a}:{a+3}], v[{16+4*ks}:{19+4*ks}], v[{36+4*j}:{39+4*j}], " + ("0" if ks == 0 else f"v[{a}:{a+3}]"))
    A("v_mov_b32 v33, s22"); A("v_mov_b32 v35, s22")
    A("s_mov_b64 exec, s[4:5]")
    for j in range(8):
        A(f"ds_write_b128 v11, v[{72+4*j}:{75+4*j}] offset:{j*256}")
    A("s_mov_b64 exec, -1")
    for jj in range(4):
        A(f"ds_read2_b32 v[{16+4*jj}:{17+4*jj}], v12 offset0:{jj*64} offset1:{jj*64+16}")
        A(f"ds_read2_b32 v[{18+4*jj}:{19+4*jj}], v12 offset0:{jj*64+32} offset1:{jj*64+48}")
    A("s_waitcnt lgkmcnt(0)")
    for jj in range(4):
        A(f"v_pk_add_f32 v[{16+4*jj}:{17+4*jj}], v[{16+4*jj}:{17+4*jj}], v[{18+4*jj}:{19+4*jj}]")
    for jj in range(4):
        A(f"v_add_f32 v{16+4*jj}, v{16+4*jj}, v{17+4*jj}")
    A("v_cvt_pk_bf16_f32 v32, v16, v20"); A("v_cvt_pk_bf16_f32 v34, v24, v28")
    A("v_writelane_b32 v32, s7, 32"); A("v_writelane_b32 v34, s7, 32")
    A("v_writelane_b32 v32, 0, 33"); A("v_writelane_b32 v34, 0, 33")
    A("s_mov_b32 exec_hi, 3")
    A("global_store_dwordx4 v15, v[32:35], s[20:21] sc1")
    A("s_mov_b64 exec, -1")
    A("s_barrier")
    A("v_lshlrev_b32 v11, 3, v0"); A(f"v_add_u32 v11, {QB}, v11")
    A(f"s_mov_b32 s29, {spin}")
    A("s_waitcnt vmcnt(0)")
    STAMP(2)
    LBL("L_qpoll")
    A("global_load_dwordx4 v[16:19], v14, s[20:21] sc1")
    A("global_load_dwordx4 v[20:23], v14, s[20:21] offset:1024 sc1")
    A("global_load_dwordx4 v[24:27], v104, s[20:21] sc1")
    A("s_waitcnt vmcnt(0)")
    for r in (17, 19, 21, 23, 25, 27): A(f"v_cmpx_eq_u32 vcc, s22, v{r}")
    A("s_sub_u32 s29, s29, 1")
    A("s_cselect_b64 s[72:73], -1, exec", "budget exhausted: stop waiting")
    A("s_mov_b64 exec, -1")
    A("s_cmp_eq_u64 s[72:73], -1"); A("s_cbranch_scc0 L_qpoll")
    A("ds_write2_b32 v11, v16, v18 offset0:0 offset1:1")
    A("ds_write2_b32 v11, v20, v22 offset0:128 offset1:129")
    for y in range(4): A(f"v_readlane_b32 s{40+y}, v24, {32+y}")
    A("v_cmp_ne_u32 vcc, s7, v24")
    C(f"pool tiles per split: 8 + {balA} * (mean parity - own XCD parity), cumulative rounding c1..c3")
    for y in range(4): A(f"s_and_b32 s{40+y}, s{40+y}, 1")
    A("s_add_u32 s41, s41, s40"); A("s_add_u32 s42, s42, s41"); A("s_add_u32 s43, s43, s42")
    A(f"s_mul_i32 s3, s43, {balA}"); A("s_add_u32 s3, s3, 32", "4 * (8 + A * mean)")
    for k in range(3):
        A(f"s_mul_i32 s4, s3, {k+1}"); A(f"s_mul_i32 s{40+k}, s{40+k}, {4*balA}"); A(f"s_sub_u32 s{40+k}, s4, s{40+k}")
        A(f"s_add_u32 s{40+k}, s{40+k}, 2"); A(f"s_lshr_b32 s{40+k}, s{40+k}, 2")
    assert 8 + 0.75 * balA <= 15.5
    A("s_lshl_b32 s41, s41, 8"); A("s_lshl_b32 s42, s42, 16"); A("s_or_b32 s40, s40, s41"); A("s_or_b32 s40, s40, s42")
    A("s_or_b32 s41, s40, 0x20000000"); A("s_lshl_b32 s40, s40, 8")
    A("s_lshl_b32 s3, s25, 3"); A("s_lshr_b32 s40, s40, s3"); A("s_lshr_b32 s41, s41, s3")
    A("s_and_b32 s40, s40, 0xff"); A("s_and_b32 s41, s41, 0xff"); A("s_sub_u32 s41, s41, s40")
    A("s_lshl_b32 s40, s40, 16"); A("s_lshl_b32 s41, s41, 8"); A("s_or_b32 s40, s40, s41")
    A("s_cmp_eq_u32 vcc_lo, 0"); A("s_cselect_b32 s3, 3, 1"); A("s_or_b32 s40, s40, s3", "first pool tile << 16 | count << 8 | same-XCD << 1 | 1")
    A("v_mov_b32 v10, s40")
    A(f"ds_write_b32 v13, v10 offset:{FLG}")
    for t in range(7): kload(t)
    LBL("L_qwait")
    A(f"ds_read_b32 v10, v13 offset:{FLG}")
    A("s_waitcnt lgkmcnt(0)")
    A("v_readfirstlane_b32 s53, v10")
    A("s_cmp_lg_u32 s53, 0"); A("s_cbranch_scc1 L_qready")
    A("s_sleep 2"); A("s_branch L_qwait")
    LBL("L_qready")
    STAMP(3)
    A("v_lshlrev_b32 v10, 8, v9"); A("v_lshl_add_u32 v10, v1, 4, v10")
    A("v_and_b32 v11, 1, v2"); A("v_lshl_add_u32 v10, v11, 6, v10", "q: head c>>2, dim half c&1")
    for j in range(2):
        A(f"ds_read_b128 v[{16+4*j}:{19+4*j}], v10 offset:{QB + j*128}")
    A("v_and_b32 v10, 3, v2"); A("v_cmp_eq_u32 s[56:57], 0, v10")
    A("s_lshl_b32 s3, s23, 3")
    A("v_lshlrev_b32 v11, 6, v9"); A("v_add_u32 v11, s3, v11")
    A("v_lshlrev_b32 v12, 6, v1"); A("v_add_u32 v14, s3, v12")
    A("s_lshl_b32 s3, s23, 11"); A("v_add_u32 v15, s3, v8")
    A("s_bfe_u32 s3, s53, 0x80010"); A("s_add_u32 s3, s3, s23")
    A("s_lshl_b32 s3, s3, 3"); A("s_add_u32 s3, s3, 7"); A("s_lshl_b32 s51, s3, 12"); A("s_add_u32 s52, s51, 0x40000")
    A("s_bfe_u32 s3, s53, 0x80008")
    A("s_cmp_le_u32 s3, s23"); A("s_cbranch_scc1 L_body7")
    A("s_add_u32 s4, s23, 8"); A("s_cmp_gt_u32 s3, s4"); A("s_cbranch_scc1 L_body9")
    def body(n):
        LBL(f"L_body{n}")
        for t in range(7, n): kload(t)
        A("s_waitcnt lgkmcnt(0)")
        def fold(t):
            d = 72 + 8*(t % 2); s = 36 + 4*t
            for r in range(4): A(f"v_permlane32_swap_b32 v{d+r}, v{d+4+r}")
            A("s_nop 0")
            for r in range(4): A(f"v_add_f32_dpp v{s+r}, v{d+4+r}, v{d+r} quad_perm:[1,0,3,2] {D}")
        C("scores; each consumed K tile is replaced by the V tile of the same keys")
        for t in range(n):
            A(f"s_waitcnt vmcnt({4*(n-1)})")
            d = 72 + 8*(t % 2)
            for z in range(2):
                for j in range(2):
                    r = KV(t) + 8*z + 4*j
                    A(f"v_mfma_f32_16x16x32_bf16 v[{d+4*z}:{d+4*z+3}], v[{r}:{r+3}], v[{16+4*j}:{19+4*j}], " + ("0" if j == 0 else f"v[{d+4*z}:{d+4*z+3}]"))
            vload(t)
            if t > 0: fold(t - 1)
        A("s_nop 0")
        fold(n - 1)
        STAMP(4)
        C("softmax numerators against this wave's max")
        regs = list(range(36, 36 + 4*n))
        A(f"v_max3_f32 v10, v{regs[0]}, v{regs[1]}, v{regs[2]}")
        for i in range(3, len(regs) - 1, 2):
            A(f"v_max3_f32 v10, v10, v{regs[i]}, v{regs[i+1]}")
        A(f"v_max_f32 v10, v10, v{regs[-1]}")
        A("v_mov_b32 v5, v10"); A("s_nop 1")
        A("v_permlane16_swap_b32 v10, v5"); A("v_max_f32 v10, v10, v5")
        A("v_mov_b32 v5, v10"); A("s_nop 1")
        A("v_permlane32_swap_b32 v10, v5"); A("v_max_f32 v10, v10, v5")
        A("v_mul_f32 v10, s71, v10")
        for r in regs: A(f"v_fma_f32 v{r}, v{r}, s71, -v10")
        for r in regs: A(f"v_exp_f32 v{r}, v{r}")
        A("s_mov_b64 exec, s[56:57]")
        A(f"ds_write_b32 v11, v10 offset:{MX}")
        A("s_mov_b64 exec, -1")
        for i in range(2*n): A(f"v_cvt_pk_bf16_f32 v{16+i}, v{36+2*i}, v{37+2*i}")
        A("s_nop 1")
        nb = (n + 1) // 2
        for u in range(nb):
            c = "0" if u == 0 else "v[104:107]"
            if 2*u + 1 < n: A(f"v_mfma_f32_16x16x32_bf16 v[104:107], v[{16+4*u}:{19+4*u}], v[108:111], {c}")
            else:
                A("s_nop 5")
                A(f"v_mfma_f32_16x16x16_bf16 v[104:107], v[{16+4*u}:{17+4*u}], v[108:109], {c}")
        A("v_mov_b32 v5, 1")
        A("s_nop 6")
        A(f"ds_write_b32 v14, v104 offset:{MX+4}")
        A("s_mov_b64 exec, 1")
        A(f"ds_add_u32 v13, v5 offset:{FLG+4}")
        A("s_mov_b64 exec, -1")
        STAMP(5)
        C("P @ V (V transposed in registers)")
        for u in range(nb):
            full = 2*u + 1 < n
            nk = 4 if full else 2
            P = f"v[{16+4*u}:{16+4*u+nk-1}]"
            for kk in range(nk):
                m = 8*u + 2*kk + 1
                A(f"s_waitcnt vmcnt({4*n - 1 - m})")
                lo, hi = 112 + 4*(m-1), 112 + 4*m
                seq = [f"v_perm_b32 v{36+4*j+kk}, v{hi+j//2}, v{lo+j//2}, {SEL(j)}" for j in range(8)]
                if kk < nk - 1:
                    for x in seq: A(x)
                else:
                    A(seq[0]); A(seq[1]); A(seq[2])
                    for j in range(8):
                        a = 72 + 4*j
                        c = "0" if u == 0 else f"v[{a}:{a+3}]"
                        if full: A(f"v_mfma_f32_16x16x32_bf16 v[{a}:{a+3}], {P}, v[{36+4*j}:{39+4*j}], {c}")
                        else:    A(f"v_mfma_f32_16x16x16_bf16 v[{a}:{a+3}], {P}, v[{36+4*j}:{37+4*j}], {c}")
                        if j + 3 < 8: A(seq[j+3])
    body(8); A("s_branch L_pvdone")
    body(9); A("s_branch L_pvdone")
    body(7)
    LBL("L_pvdone")
    STAMP(6)
    A("s_nop 0")
    A("ds_write2st64_b32 v15, v72, v76 offset0:0 offset1:1")
    A("ds_write2st64_b32 v15, v80, v84 offset0:2 offset1:3")
    A("s_nop 2")
    A("ds_write2st64_b32 v15, v88, v92 offset0:4 offset1:5")
    A("s_nop 1")
    A("ds_write2st64_b32 v15, v96, v100 offset0:6 offset1:7")
    A("s_cmp_ge_u32 s23, 4"); A("s_cbranch_scc1 L_late")
    if presum:
        A("s_mov_b64 exec, 1"); A(f"ds_add_u32 v13, v5 offset:{FLG+12}"); A("s_mov_b64 exec, -1")
    C("waves 0-3. wo goes straight to LDS: chunk c of row 4i+g is fetched from chunk c ^ 2h, h = g | (i&2)<<1")
    A("v_lshlrev_b32 v3, 1, v1"); A("v_xor_b32 v3, v3, v2"); A("v_lshlrev_b32 v3, 4, v3"); A("v_lshl_add_u32 v3, v1, 10, v3")
    A("v_xor_b32 v4, 0x80, v3")
    A("s_lshl_b32 s3, s23, 9"); A("v_add_u32 v11, s3, v8")
    C("transposing B reads: row 8g + r, 32-byte group j ^ (r | (g&1)<<2), 8-byte piece c&3 (r = c>>2)")
    A("v_and_b32 v15, 1, v1"); A("v_lshl_add_u32 v15, v15, 2, v9"); A("v_xor_b32 v15, s23, v15")
    A("v_lshl_add_u32 v14, v1, 3, v9"); A("v_lshlrev_b32 v14, 8, v14"); A("v_lshl_add_u32 v14, v15, 5, v14")
    A("v_and_b32 v15, 3, v2"); A("v_lshl_add_u32 v14, v15, 3, v14")
    A("v_xor_b32 v98, 0x80, v14")
    A("v_mul_u32_u24 v15, 320, v15"); A("v_lshl_add_u32 v15, v1, 4, v15")
    C("output partials [branch][head][Y][j][batch pair][16] x 16 B")
    A("s_lshl_b32 s3, s54, 14"); A("s_lshl_b32 s29, s25, 12"); A("s_add_u32 s3, s3, s29")
    A("s_lshl_b32 s29, s23, 10"); A("s_add_u32 s7, s3, s29"); A("s_lshl_b32 s29, s23, 9"); A("s_add_u32 s3, s3, s29")
    A("v_lshlrev_b32 v97, 4, v0"); A("v_add_u32 v99, s3, v97")
    A("v_cmp_eq_u32 s[56:57], 1, v1")
    A("v_mov_b32 v5, 1")
    A("s_lshl_b32 s6, s25, 5"); A("s_add_u32 s6, s6, s54", "final reducer id")
    if f4:
        A("v_lshrrev_b32 v8, 1, v0"); A("v_and_b32 v9, 1, v0"); A("s_lshl_b32 s4, s23, 1"); A("v_add_u32 v9, s4, v9")
    else:
        A("v_lshrrev_b32 v8, 3, v0"); A("v_and_b32 v9, 7, v0")
    A("v_lshlrev_b32 v8, 14, v8"); A("v_lshl_add_u32 v8, v9, 4, v8")
    A("s_lshl_b32 s29, s6, 7"); A("v_add_u32 v8, s29, v8")
    A("s_bfe_u32 s4, s6, 0x10001"); A("s_lshl_b32 s4, s4, 12")
    A("s_lshl_b32 s5, s28, 10"); A("s_add_u32 s4, s4, s5")
    A("s_lshl_b32 s5, s25, 8"); A("s_add_u32 s4, s4, s5")
    A("s_and_b32 s5, s6, 1"); A("s_lshl_b32 s5, s5, 4"); A("s_add_u32 s4, s4, s5")
    A("s_bfe_u32 s5, s6, 0x30002"); A("s_lshl_b32 s5, s5, 5"); A("s_add_u32 s4, s4, s5")
    A("v_lshlrev_b32 v9, 1, v9"); A("v_add_u32 v9, s4, v9")
    A("v_lshrrev_b32 v7, 5, v0"); A("v_lshl_add_u32 v9, v7, 11, v9")
    A(f"s_mov_b32 s29, {spin}")
    LBL("L_cnt")
    A(f"ds_read_b32 v10, v13 offset:{FLG+4}")
    A("s_waitcnt lgkmcnt(0)")
    A("v_readfirstlane_b32 s4, v10")
    A("s_cmp_ge_u32 s4, 8"); A("s_cbranch_scc1 L_cntok")
    A("s_sleep 2"); A("s_branch L_cnt")
    LBL("L_cntok")
    for i in range(4): A(f"ds_read_b128 v[{16+4*i}:{19+4*i}], v12 offset:{MX + 16*i}")
    def woloads(lo, hi):
        for i in range(lo, hi):
            A(f"s_add_u32 m0, s16, {i*1024}")
            A(f"s_mov_b32 s3, {i*4096}")
            A(f"buffer_load_dwordx4 {'v4' if i & 2 else 'v3'}, s[12:15], s3 offen nt lds")
    woloads(0, 8 - wl)
    for r in (81, 83, 85, 87, 33): A(f"v_mov_b32 v{r}, s22")
    A("s_waitcnt lgkmcnt(0)")
    A("v_max3_f32 v44, v16, v18, v20"); A("v_max3_f32 v44, v44, v22, v24"); A("v_max3_f32 v44, v44, v26, v28"); A("v_max_f32 v44, v44, v30")
    for w in range(8): A(f"v_sub_f32 v{36+w}, v{16+2*w}, v44")
    for w in range(8): A(f"v_exp_f32 v{36+w}, v{36+w}")
    A("s_nop 0")
    A("v_mul_f32 v46, v36, v17")
    for w in range(1, 8): A(f"v_fmac_f32 v46, v{36+w}, v{17+2*w}")
    A("v_log_f32 v45, v46"); A("v_rcp_f32 v46, v46")
    A("s_nop 0")
    A("v_add_f32 v35, v44, v45", "log2-sum-exp of this split")
    for w in range(8): A(f"v_mul_f32 v{36+w}, v{36+w}, v46")
    A("v_xor_b32 v35, s22, v35")
    def red(lo, hi):
        for ww in range(lo, hi): A(f"ds_read2st64_b32 v[{16+2*ww}:{17+2*ww}], v11 offset0:{ww*8} offset1:{ww*8+1}")
        for ww in range(lo, hi):
            A(f"s_waitcnt lgkmcnt({hi - 1 - ww})")
            if ww == 0: A("v_mul_f32 v32, v36, v16"); A("v_mul_f32 v34, v36, v17")
            else: A(f"v_fmac_f32 v32, v{36+ww}, v{16+2*ww}"); A(f"v_fmac_f32 v34, v{36+ww}, v{17+2*ww}")
    if presum:
        LBL("L_ps")
        A(f"ds_read_b32 v10, v13 offset:{FLG+12}")
        A("s_waitcnt lgkmcnt(0)")
        A("v_readfirstlane_b32 s4, v10")
        A("s_cmp_ge_u32 s4, 4"); A("s_cbranch_scc0 L_ps")
        red(0, 4)
    if th:
        LBL("L_th")
        A(f"ds_read_b32 v10, v13 offset:{FLG+12}")
        A("s_waitcnt lgkmcnt(0)")
        A("v_readfirstlane_b32 s4, v10")
        A(f"s_cmp_ge_u32 s4, {th}"); A("s_cbranch_scc0 L_th")
        woloads(8 - wl, 8)
    A("s_barrier", "all partial o are in LDS")
    STAMP(7)
    red(4 if presum else 0, 8)
    A("global_store_dwordx4 v6, v[32:35], s[60:61] sc1")
    if tst: STAMP(4)
    if not th: woloads(8 - wl, 8)
    A("buffer_load_dword v148, v97, s[64:67], s7 offen sc1", "pull the lines written below into L2 (values unused)")
    A("global_load_dword v149, v13, s[18:19]", "warm the d_out translation (value unused)")
    A("s_waitcnt vmcnt(3)" if th else "s_waitcnt vmcnt(2)")
    if tst: STAMP(5)
    A("s_mov_b64 exec, 1"); A(f"ds_add_u32 v13, v5 offset:{FLG+8}"); A("s_mov_b64 exec, -1")
    LBL("L_bf")
    A(f"ds_read_b32 v16, v13 offset:{FLG+8}")
    A("s_waitcnt lgkmcnt(0)")
    A("v_readfirstlane_b32 s4, v16")
    A("s_cmp_ge_u32 s4, 4"); A("s_cbranch_scc0 L_bf")
    for z in range(2):
        for ks in range(4):
            for hf in range(2):
                r = 48 + 16*z + 4*ks + 2*hf
                A(f"ds_read_b64_tr_b16 v[{r}:{r+1}], {'v98' if z else 'v14'} offset:{WOT + ks*8192 + hf*1024}")
        A("s_waitcnt lgkmcnt(0)")
    A("s_barrier", "combined o is in LDS")
    STAMP(8)
    for ks in range(4):
        A(f"ds_read_b128 v[{16+4*ks}:{19+4*ks}], v15 offset:{OB + ks*64}")
    for ks in range(4):
        A(f"s_waitcnt lgkmcnt({3 - ks})")
        for z in range(2):
            d = 32 + 4*z
            A(f"v_mfma_f32_16x16x32_bf16 v[{d}:{d+3}], v[{16+4*ks}:{19+4*ks}], v[{48+16*z+4*ks}:{51+16*z+4*ks}], " + ("0" if ks == 0 else f"v[{d}:{d+3}]"))
    A("s_bitcmp1_b32 s53, 1")
    A("s_nop 5")
    A("v_cndmask_b32 v80, v32, v34, s[56:57]"); A("v_cndmask_b32 v82, v33, v35, s[56:57]")
    A("v_cndmask_b32 v84, v36, v38, s[56:57]"); A("v_cndmask_b32 v86, v37, v39, s[56:57]")
    A("s_mov_b32 exec_hi, 0")
    A("s_cbranch_scc1 L_ostl")
    A("buffer_store_dwordx4 v[80:83], v99, s[64:67], 0 offen sc1")
    A("buffer_store_dwordx4 v[84:87], v99, s[64:67], 0 offen offset:2048 sc1")
    A("s_branch L_ostd")
    LBL("L_ostl")
    A("buffer_store_dwordx4 v[80:83], v99, s[64:67], 0 offen", "all 32 readers reported this XCD: L2 is enough")
    A("buffer_store_dwordx4 v[84:87], v99, s[64:67], 0 offen offset:2048")
    LBL("L_ostd")
    if tst: STAMP(1)
    if f4:
        A("s_mov_b64 exec, -1")
        LBL("L_f4")
        A("buffer_load_dwordx4 v[16:19], v8, s[64:67], 0 offen sc1")
        A("s_waitcnt vmcnt(0)")
        A("v_cmpx_eq_u32 vcc, s22, v17"); A("v_cmpx_eq_u32 vcc, s22, v19")
        A("s_cmp_eq_u64 exec, -1")
        A("s_mov_b64 exec, -1")
        A("s_cbranch_scc1 L_f4ok")
        A("s_sub_u32 s29, s29, 1"); A("s_cbranch_scc0 L_f4")
        LBL("L_f4ok")
        if tst: STAMP(2)
        A("s_nop 0")
        A("v_permlane32_swap_b32 v16, v18")
        A("v_add_f32 v16, v16, v18")
        for x in ("quad_perm:[2,3,0,1]", "row_ror:4", "row_ror:8"):
            A("s_nop 1"); A(f"v_add_f32_dpp v16, v16, v16 {x} {D}")
        A("v_mov_b32 v17, v16"); A("s_nop 1")
        A("v_permlane16_swap_b32 v16, v17")
        A("v_add_f32 v16, v16, v17")
        A("s_mov_b32 exec_lo, 3"); A("s_mov_b32 exec_hi, 3")
        A("v_cvt_pk_bf16_f32 v16, v16, v16")
        A("global_store_short v9, v16, s[18:19]")
        A("s_or_b32 s6, s6, s23")
        A("s_branch L_ep")
    LBL("L_late")
    if th:
        A("s_mov_b64 exec, 1"); A(f"ds_add_u32 v13, v5 offset:{FLG+12}"); A("s_mov_b64 exec, -1")
    A("s_waitcnt lgkmcnt(0)")
    A("s_barrier")
    A("s_atomic_add s17, s[58:59], 0", "hint only: the tags decide")
    STAMP(7)
    A("v_lshlrev_b32 v10, 4, v2"); A("v_lshl_add_u32 v10, v1, 2, v10")
    A("s_mul_i32 s3, s63, 320"); A("v_add_u32 v10, s3, v10")
    A(f"s_mov_b32 s29, {spin}")
    LBL("L_sg")
    A("s_load_dwordx2 s[4:5], s[10:11], 0 glc")
    A("s_waitcnt lgkmcnt(0)")
    A("s_cmp_eq_u32 s5, s22"); A("s_cselect_b32 s4, s4, 0")
    A("s_cmp_ge_u32 s4, 4"); A("s_cbranch_scc1 L_sgok")
    if asl:
        A("s_cmp_ge_u32 s4, 3"); A("s_cbranch_scc1 L_sg3")
        A(f"s_sleep {asl}")
        LBL("L_sg3")
    A("s_sub_u32 s29, s29, 1"); A("s_cbranch_scc0 L_sg")
    A("s_mov_b32 s29, 0")
    LBL("L_sgok")
    if tst: STAMP(3)
    def maskpoll(name, loads, verify):
        for y in range(4): A(loads[y])
        LBL(name)
        A("s_waitcnt vmcnt(0)")
        for x in verify: A(x)
        A("s_cmp_eq_u64 exec, -1")
        A("s_mov_b64 exec, -1")
        A(f"s_cbranch_scc1 {name}_ok")
        for y in range(4): A(f"v_cmp_ne_u32 s[{44+2*y}:{45+2*y}], s22, v{17+4*y}")
        A("s_or_b64 s[72:73], s[44:45], s[46:47]"); A("s_or_b64 s[4:5], s[48:49], s[50:51]")
        A("s_or_b64 s[72:73], s[72:73], s[4:5]")
        A(f"s_cbranch_scc1 {name}_r")
        for y in range(4): A(f"s_mov_b64 s[{44+2*y}:{45+2*y}], -1")
        LBL(f"{name}_r")
        A("s_sub_u32 s29, s29, 1"); A(f"s_cbranch_scc1 {name}_ok")
        for y in range(4):
            A(f"s_mov_b64 exec, s[{44+2*y}:{45+2*y}]")
            A(f"s_cbranch_execz {name}_s{y}")
            A(loads[y])
            LBL(f"{name}_s{y}")
        A("s_mov_b64 exec, -1")
        A(f"s_branch {name}")
        LBL(f"{name}_ok")
    maskpoll("L_opoll", [f"global_load_dwordx4 v[{16+4*y}:{19+4*y}], v7, s[60:61] offset:{y*1024} sc1" for y in range(4)],
             [f"v_mov_b32_dpp v{32+y}, v{19+4*y} row_ror:1 {D}" for y in range(4)] + [f"v_cmpx_eq_u32 vcc, s22, v{17+4*y}" for y in range(4)] +
             [f"v_cmpx_eq_u32 vcc, v{32+y}, v{19+4*y}" for y in range(4)])
    if tst: STAMP(4)
    C("combine the four splits")
    for y in range(4): A(f"v_xor_b32 v{19+4*y}, s22, v{19+4*y}")
    A("v_max3_f32 v36, v19, v23, v27"); A("v_max_f32 v36, v36, v31")
    for y in range(4): A(f"v_sub_f32 v{32+y}, v{19+4*y}, v36")
    for y in range(4): A(f"v_exp_f32 v{32+y}, v{32+y}")
    A("s_nop 0")
    A("v_add_f32 v36, v32, v33"); A("v_add_f32 v37, v34, v35")
    A("v_mul_f32 v38, v32, v16"); A("v_add_f32 v36, v36, v37"); A("v_mul_f32 v39, v32, v18")
    A("v_rcp_f32 v36, v36")
    for y in range(1, 4):
        A(f"v_fmac_f32 v38, v{32+y}, v{16+4*y}"); A(f"v_fmac_f32 v39, v{32+y}, v{18+4*y}")
    A("v_mul_f32 v38, v38, v36"); A("v_mul_f32 v39, v39, v36")
    A("v_cvt_pk_bf16_f32 v38, v38, v39")
    A(f"ds_write_b32 v10, v38 offset:{OB}")
    A("s_waitcnt lgkmcnt(0)")
    A("s_barrier")
    STAMP(8)
    A(f"s_branch {END}")
    LBL("L_ep")
    A("s_mov_b64 exec, 1")
    A("s_cmp_lg_u32 s6, 0"); A("s_cbranch_scc1 L_noep")
    A("global_store_dword v13, v81, s[74:75]", "every workgroup of this branch has read the epoch word by now")
    LBL("L_noep")
    if pad:
        A(f"s_add_u32 s96, s96, {pad*100}")
        LBL("L_pad")
        A("s_memrealtime s[98:99]"); A("s_waitcnt lgkmcnt(0)")
        A("s_sub_u32 s98, s98, s96"); A("s_cmp_lt_i32 s98, 0"); A("s_cbranch_scc1 L_pad")
    if stamps:
        LBL("L_dump")
        STAMP(9)
        A("s_mov_b64 exec, 1")
        A("s_waitcnt lgkmcnt(0)")
        A("s_lshl_b32 s3, s2, 3"); A("s_add_u32 s3, s3, s23")
        A(f"s_mul_i32 s3, s3, 96"); A(f"s_add_u32 s3, s3, {STAMP_OFF}")
        A("s_add_u32 s20, s20, s3"); A("s_addc_u32 s21, s21, 0")
        A("s_getreg_b32 s96, hwreg(HW_REG_XCC_ID)"); A("s_getreg_b32 s97, hwreg(HW_REG_HW_ID)")
        A("v_mov_b32 v12, 0")
        for i in range(11):
            A(f"v_mov_b32 v16, s{76+2*i}"); A(f"v_mov_b32 v17, s{77+2*i}")
            A(f"global_store_dwordx2 v12, v[16:17], s[20:21] offset:{8*i}")
            A("s_nop 1")
    LBL("L_end")
    A("s_endpgm")
    L.append('.section .rodata,"a"'); L.append(".p2align 6"); L.append(f".amdhsa_kernel {NAME}_kernel")
    for s in ["next_free_vgpr 256", f"next_free_sgpr {100 if (stamps or pad) else 76}", "accum_offset 256", "group_segment_fixed_size 0", "kernarg_size 104",
              "user_sgpr_count 2", "user_sgpr_kernarg_segment_ptr 1", "system_sgpr_workgroup_id_x 1"]:
        L.append("  .amdhsa_" + s)
    L.append(".end_amdhsa_kernel")
    return "\n".join(L) + "\n"

if __name__ == "__main__":
    open("fin2.s", "w").write(gen())
    for a in (0, 4, 8, 16, 32):
        open(f"o_{a}.s", "w").write(gen(stamps=True, asl=a))
```

```python
import math, struct, sys
NAME = "concat_heads__gqa_block_cached__gqa_block_cached__decode"
HDR = open("cdna_kernels/" + NAME + ".s.ref").read().split("; Override launch")[0]

ORED = 0
QB   = 0x4000
MX   = 0x4400
FLG  = 0x4580
LS   = 0x4600
OB   = 0x4800
WOT  = 0x8000
LDS_BYTES = 0x10000
WS_ID, WS_Q, WS_CT, WS_O, WS_OUT, WS_E = 0x8000, 0x10000, 0x40000, 0x100000, 0x200000, 0x300000
STAMP_OFF = 0x8000000
D = "row_mask:0xf bank_mask:0xf"

DOC = """; One workgroup per CU, 8 waves. wg = head*8 + x, x = (Y>>1)*4 + branch*2 + (Y&1), head = kvh*4 + X.
;  - hand-offs are 16-byte granules tagged with (launch epoch word in d_ws) + 1; every wait is bounded."""

def gen(stamps=False, spin=2000000, k0=2, wl=4, balA=9, pad=0, f4=1, presum=1, tst=0, th=0, asl=4):
    L = []
    def A(s, c=None): L.append("    " + s + (f"    ; {c}" if c else ""))
    def C(s): L.append("    ; " + s)
    def LBL(s): L.append(s + ":")
    def STAMP(i):
        if stamps: A(f"s_memrealtime s[{76+2*i}:{77+2*i}]")
    def KV(t): return 112 + 16*t
    def SEL(j): return 's30' if j % 2 == 0 else 's31'
    END = "L_dump" if stamps else "L_end"
    L.append(HDR.rstrip("\n"))
    L.append(f"; @launch grid=(256,1,1) block=(512,1,1) lds={LDS_BYTES}")
    L.append(DOC)
    L.append('.amdgcn_target "amdgcn-amd-amdhsa--gfx950"')
    L.append(".text"); L.append(f".globl {NAME}_kernel"); L.append(".p2align 8")
    L.append(f".type {NAME}_kernel,@function"); LBL(f"{NAME}_kernel")
    STAMP(0)
    if stamps:
        A("s_waitcnt lgkmcnt(0)")
        for i in range(1, 10): A(f"s_mov_b64 s[{76+2*i}:{77+2*i}], s[76:77]")
    if pad: A("s_memrealtime s[96:97]")
    A("s_cmp_ge_u32 s2, 256"); A("s_cbranch_scc1 L_end")
    A("s_bfe_u32 s28, s2, 0x10001", "branch")
    A("s_mul_i32 s3, s28, 40")
    A("s_add_u32 s4, s0, s3"); A("s_addc_u32 s5, s1, 0")
    A("s_load_dwordx8 s[8:15], s[4:5], 0", "x, k, v, wq")
    A("s_load_dwordx2 s[20:21], s[0:1], 96", "ws")
    A("s_load_dwordx2 s[16:17], s[4:5], 32", "wo")
    A("s_load_dwordx2 s[18:19], s[0:1], 80", "out")
    A("v_lshrrev_b32 v9, 6, v0"); A("v_and_b32 v0, 63, v0", "lane")
    A("v_lshrrev_b32 v1, 4, v0", "g = lane >> 4")
    A("v_readfirstlane_b32 s23, v9", "wave")
    A("v_and_b32 v2, 15, v0", "c = lane & 15")
    A("s_bfe_u32 s24, s2, 0x20003", "X")
    A("s_bfe_u32 s25, s2, 0x10002"); A("s_lshl_b32 s25, s25, 1"); A("s_and_b32 s3, s2, 1"); A("s_or_b32 s25, s25, s3", "Y")
    A("s_lshr_b32 s26, s2, 5", "kvh")
    A("s_lshr_b32 s54, s2, 3", "head")
    A("v_lshrrev_b32 v9, 2, v2", "c >> 2")
    A("v_lshlrev_b32 v4, 4, v2")
    A("s_cmp_lg_u32 s23, 0"); A("s_cbranch_scc1 L_common")
    C("wave 0: wq rows ks*128 + (c>>2)*32 + g*8 + e, columns kvh*512 + (Y*4+X)*32 + (c&3)*8")
    A("v_and_b32 v11, 3, v2")
    A("v_lshlrev_b32 v5, 18, v9"); A("v_lshl_add_u32 v5, v1, 16, v5"); A("v_lshl_add_u32 v5, v11, 4, v5")
    A("v_lshlrev_b32 v10, 10, v11"); A("v_lshl_add_u32 v10, v9, 6, v10"); A("v_lshl_add_u32 v10, v1, 4, v10")
    A("s_lshl_b32 s62, s25, 2"); A("s_add_u32 s62, s62, s24", "q column tile")
    A("s_lshl_b32 s6, s26, 10"); A("s_lshl_b32 s29, s62, 6"); A("s_add_u32 s6, s6, s29")
    A("s_sub_u32 s42, 0x400000, s6"); A("s_mov_b32 s43, 0x20000")
    for r in (12, 13, 14, 15): A(f"v_mov_b32 v{r}, 0")
    A(f"ds_write_b128 v13, v[12:15] offset:{FLG}")
    A("s_waitcnt lgkmcnt(0)")
    A("s_add_u32 s40, s14, s6"); A("s_addc_u32 s41, s15, 0")
    for ks in range(4):
        for e in range(8):
            r = 112 + 32*ks + 4*e
            o = (ks*128 + e) * 8192
            if o: A(f"s_mov_b32 s3, {o}")
            A(f"buffer_load_dwordx4 v[{r}:{r+3}], v5, s[40:43], {'s3' if o else '0'} offen")
        A(f"global_load_dwordx4 v[{16+4*ks}:{19+4*ks}], v10, s[8:9] offset:{ks*256}")
    LBL("L_common")
    A("v_and_b32 v3, 7, v2"); A("v_lshlrev_b32 v3, 8, v3"); A("v_lshl_add_u32 v3, v1, 4, v3")
    A("v_lshrrev_b32 v8, 3, v2"); A("v_lshl_add_u32 v3, v8, 6, v3", "K: key c&7, bytes (c>>3)*64 + g*16 of a 128-byte half row")
    A("v_lshl_add_u32 v4, v1, 10, v4", "V: key 4g (+r), bytes c*16")
    A("s_lshl_b32 s7, s24, 3"); A("s_add_u32 s7, s7, s26"); A("s_lshl_b32 s7, s7, 20", "sequence (X, kvh)")
    C("fixed tiles: quarter (X+Y)&3, 8-tile region (wave+head)&7, tiles 0..6 (tile 7 of every region is in the shared pool)")
    A("s_add_u32 s44, s25, s24"); A("s_and_b32 s44, s44, 3"); A("s_lshl_b32 s44, s44, 3")
    A("s_add_u32 s29, s54, s23"); A("s_and_b32 s29, s29, 7"); A("s_add_u32 s44, s44, s29"); A("s_lshl_b32 s44, s44, 15")
    for t in range(1, 7): A(f"s_add_u32 s{44+t}, s44, {t*4096}")
    A("s_mov_b32 s34, 0x100000"); A("s_mov_b32 s35, 0x20000")
    A("s_waitcnt lgkmcnt(0)")
    A("s_add_u32 s32, s10, s7"); A("s_addc_u32 s33, s11, 0")
    A("s_lshl_b32 s3, s28, 7"); A(f"s_add_u32 s3, s3, {WS_E}"); A("s_add_u32 s74, s20, s3"); A("s_addc_u32 s75, s21, 0")
    A("s_load_dword s22, s[74:75], 0", "epoch word")
    A("s_barrier", "wq loads are in the queue first; LDS flags cleared")
    def kload(t):
        for j in range(4):
            r = KV(t) + 4*j
            A(f"buffer_load_dwordx4 v[{r}:{r+3}], v3, s[32:35], s{44+t} offen offset:{(j//2)*2048 + (j%2)*128} nt")
    def vload(t):
        for j in range(4):
            r = KV(t) + 4*j
            A(f"buffer_load_dwordx4 v[{r}:{r+3}], v4, s[36:39], s{44+t} offen offset:{j*256} nt")
    A("s_cmp_eq_u32 s23, 0"); A("s_cbranch_scc1 L_setup")
    for t in range(k0): kload(t)
    LBL("L_setup")
    A("s_add_u32 s36, s12, s7"); A("s_addc_u32 s37, s13, 0"); A("s_mov_b32 s38, 0x100000"); A("s_mov_b32 s39, 0x20000")
    A("s_mov_b32 s30, 0x05040100"); A("s_mov_b32 s31, 0x07060302")
    A("s_lshl_b32 s27, s28, 3"); A("s_add_u32 s27, s27, s26", "group")
    A("s_lshl_b32 s3, s27, 15")
    A(f"s_add_u32 s29, s3, {WS_O}"); A("s_add_u32 s60, s20, s29"); A("s_addc_u32 s61, s21, 0")
    A("s_lshl_b32 s3, s28, 19")
    A(f"s_add_u32 s29, s3, {WS_OUT}"); A("s_add_u32 s64, s20, s29"); A("s_addc_u32 s65, s21, 0")
    A("s_mov_b32 s66, 0x80000"); A("s_mov_b32 s67, 0x20000")
    A("s_mov_b32 s68, 0x20000"); A("s_mov_b32 s69, 0x40000"); A("s_mov_b32 s70, 0x60000")
    cs = (128 ** -0.5) * math.log2(math.e)
    A(f"s_mov_b32 s71, 0x{struct.unpack('<I', struct.pack('<f', cs))[0]:08x}", "log2(e) / sqrt(128)")
    A("s_and_b32 s63, s23, 3")
    C("arrival counters [group][b][y], one line each: wave 4+y adds to (X, y) and watches (y, Y)")
    A("s_lshl_b32 s3, s27, 4"); A("s_lshl_b32 s4, s24, 2"); A("s_add_u32 s4, s4, s3"); A("s_add_u32 s4, s4, s63")
    A("s_lshl_b32 s4, s4, 7"); A(f"s_add_u32 s55, s4, {WS_CT}"); A("s_add_u32 s58, s20, s55"); A("s_addc_u32 s59, s21, 0")
    A("s_lshl_b32 s4, s63, 2"); A("s_add_u32 s4, s4, s3"); A("s_add_u32 s4, s4, s25")
    A("s_lshl_b32 s4, s4, 7"); A(f"s_add_u32 s4, s4, {WS_CT}"); A("s_add_u32 s10, s20, s4"); A("s_addc_u32 s11, s21, 0")
    C("o granules [group][head'][b][split][32 x 16 B]: v6 publish, v7 collect")
    A("s_lshl_b32 s3, s24, 11"); A("s_lshl_b32 s29, s25, 9"); A("s_add_u32 s3, s3, s29")
    A("s_lshl_b32 s29, s63, 7"); A("s_add_u32 s3, s3, s29")
    A("v_lshrrev_b32 v6, 1, v2"); A("v_lshlrev_b32 v6, 4, v6"); A("v_lshl_add_u32 v6, v1, 13, v6"); A("v_add_u32 v6, s3, v6")
    A("s_lshl_b32 s3, s24, 13"); A("s_lshl_b32 s29, s63, 11"); A("s_add_u32 s3, s3, s29")
    A("v_lshlrev_b32 v7, 4, v0"); A("v_add_u32 v7, s3, v7")
    A("v_lshlrev_b32 v8, 2, v0")
    C("wo rows head*128 + (wave&3)*32 ..., columns Y*128 ...")
    A("s_lshl_b32 s3, s54, 17"); A("s_lshl_b32 s29, s63, 15"); A("s_add_u32 s3, s3, s29")
    A("s_lshl_b32 s29, s25, 8"); A("s_add_u32 s3, s3, s29")
    A("s_add_u32 s12, s16, s3"); A("s_addc_u32 s13, s17, 0"); A("s_mov_b32 s14, 0x8000"); A("s_mov_b32 s15, 0x20000")
    A("s_lshl_b32 s16, s63, 13"); A(f"s_add_u32 s16, s16, {WOT}"); A("s_mov_b32 s17, 1")
    for i in range(4): A(f"v_mov_b32 v{108+i}, 0x3f803f80")
    A("v_mov_b32 v13, 0")
    A("s_waitcnt lgkmcnt(0)")
    A("s_add_u32 s22, s22, 1", "tag = epoch + 1")
    A("s_cmp_eq_u32 s23, 0"); A("s_cbranch_scc1 L_service")
    A("s_barrier", "wave 0 has issued its hand-off store: open the load stream")
    for t in range(k0, 7): kload(t)
    STAMP(1)
    A("s_branch L_qwait")
    LBL("L_service")
    A("s_getreg_b32 s7, hwreg(HW_REG_XCC_ID, 0, 4)")
    A("v_cmp_eq_u32 s[4:5], v1, v9", "result lanes whose row group matches their column group")
    A("v_lshlrev_b32 v11, 4, v2")
    A("v_and_b32 v12, 1, v0"); A("v_lshlrev_b32 v12, 10, v12"); A("v_bfe_u32 v14, v0, 1, 2"); A("v_lshl_add_u32 v12, v14, 4, v12")
    A("v_bfe_u32 v14, v0, 3, 2"); A("v_lshl_add_u32 v12, v14, 2, v12")
    A("v_and_b32 v15, 7, v0"); A("v_lshlrev_b32 v15, 4, v15"); A("v_lshl_add_u32 v15, v14, 11, v15")
    A("s_lshl_b32 s6, s27, 13"); A(f"s_add_u32 s6, s6, {WS_Q}")
    A("s_lshl_b32 s3, s62, 7"); A("s_add_u32 s3, s3, s6"); A("v_add_u32 v15, s3, v15", "q granules [group][b][tile][8]")
    A("s_lshl_b32 s3, s24, 11"); A("s_add_u32 s3, s3, s6"); A("v_lshlrev_b32 v104, 4, v0"); A("v_add_u32 v14, s3, v104")
    C("XCD ids [branch*4+Y][head]: lanes 0-31 read this column set, 32-35 the splits of this sequence, 36+ its counters")
    A("s_lshl_b32 s3, s28, 11"); A(f"s_add_u32 s3, s3, {WS_ID}")
    A("s_lshl_b32 s6, s25, 9"); A("s_add_u32 s6, s6, s3"); A("s_lshl_b32 s8, s54, 4")
    A("v_add_u32 v104, s6, v104")
    A("s_add_u32 s3, s3, s8"); A("v_and_b32 v106, 3, v0"); A("v_lshlrev_b32 v105, 9, v106"); A("v_add_u32 v105, s3, v105")
    A("v_cmp_gt_u32 vcc, 32, v0")
    A("s_add_u32 s6, s6, s8")
    A("v_lshlrev_b32 v106, 7, v106"); A("v_add_u32 v106, s55, v106")
    A("v_cndmask_b32 v104, v105, v104, vcc")
    A("v_cmp_gt_u32 vcc, 36, v0")
    A("s_lshl_b32 s3, s25, 7"); A("s_add_u32 s3, s3, s55", "counter (X, Y) is cleared by this workgroup")
    A("v_cndmask_b32 v104, v106, v104, vcc")
    A("v_writelane_b32 v15, s6, 32"); A("v_writelane_b32 v15, s3, 33")
    for ks in range(4):
        for kk in range(4):
            A(f"s_waitcnt vmcnt({35 - (9*ks + 2*kk + 1) - (1 if kk == 3 else 0)})")
            lo, hi = 112 + 32*ks + 8*kk, 112 + 32*ks + 8*kk + 4
            for j in range(8):
                A(f"v_perm_b32 v{36+4*j+kk}, v{hi+j//2}, v{lo+j//2}, {SEL(j)}")
        for j in range(8):
            a = 72 + 4*j
            A(f"v_mfma_f32_16x16x32_bf16 v[{a}:{a+3}], v[{16+4*ks}:{19+4*ks}], v[{36+4*j}:{39+4*j}], " + ("0" if ks == 0 else f"v[{a}:{a+3}]"))
    A("v_mov_b32 v33, s22"); A("v_mov_b32 v35, s22")
    A("s_mov_b64 exec, s[4:5]")
    for j in range(8):
        A(f"ds_write_b128 v11, v[{72+4*j}:{75+4*j}] offset:{j*256}")
    A("s_mov_b64 exec, -1")
    for jj in range(4):
        A(f"ds_read2_b32 v[{16+4*jj}:{17+4*jj}], v12 offset0:{jj*64} offset1:{jj*64+16}")
        A(f"ds_read2_b32 v[{18+4*jj}:{19+4*jj}], v12 offset0:{jj*64+32} offset1:{jj*64+48}")
    A("s_waitcnt lgkmcnt(0)")
    for jj in range(4):
        A(f"v_pk_add_f32 v[{16+4*jj}:{17+4*jj}], v[{16+4*jj}:{17+4*jj}], v[{18+4*jj}:{19+4*jj}]")
    for jj in range(4):
        A(f"v_add_f32 v{16+4*jj}, v{16+4*jj}, v{17+4*jj}")
    A("v_cvt_pk_bf16_f32 v32, v16, v20"); A("v_cvt_pk_bf16_f32 v34, v24, v28")
    A("v_writelane_b32 v32, s7, 32"); A("v_writelane_b32 v34, s7, 32")
    A("v_writelane_b32 v32, 0, 33"); A("v_writelane_b32 v34, 0, 33")
    A("s_mov_b32 exec_hi, 3")
    A("global_store_dwordx4 v15, v[32:35], s[20:21] sc1")
    A("s_mov_b64 exec, -1")
    A("s_barrier")
    A("v_lshlrev_b32 v11, 3, v0"); A(f"v_add_u32 v11, {QB}, v11")
    A(f"s_mov_b32 s29, {spin}")
    A("s_waitcnt vmcnt(0)")
    STAMP(2)
    LBL("L_qpoll")
    A("global_load_dwordx4 v[16:19], v14, s[20:21] sc1")
    A("global_load_dwordx4 v[20:23], v14, s[20:21] offset:1024 sc1")
    A("global_load_dwordx4 v[24:27], v104, s[20:21] sc1")
    A("s_waitcnt vmcnt(0)")
    for r in (17, 19, 21, 23, 25, 27): A(f"v_cmpx_eq_u32 vcc, s22, v{r}")
    A("s_sub_u32 s29, s29, 1")
    A("s_cselect_b64 s[72:73], -1, exec", "budget exhausted: stop waiting")
    A("s_mov_b64 exec, -1")
    A("s_cmp_eq_u64 s[72:73], -1"); A("s_cbranch_scc0 L_qpoll")
    A("ds_write2_b32 v11, v16, v18 offset0:0 offset1:1")
    A("ds_write2_b32 v11, v20, v22 offset0:128 offset1:129")
    for y in range(4): A(f"v_readlane_b32 s{40+y}, v24, {32+y}")
    A("v_cmp_ne_u32 vcc, s7, v24")
    C(f"pool tiles per split: 8 + {balA} * (mean parity - own XCD parity), cumulative rounding c1..c3")
    for y in range(4): A(f"s_and_b32 s{40+y}, s{40+y}, 1")
    A("s_add_u32 s41, s41, s40"); A("s_add_u32 s42, s42, s41"); A("s_add_u32 s43, s43, s42")
    A(f"s_mul_i32 s3, s43, {balA}"); A("s_add_u32 s3, s3, 32", "4 * (8 + A * mean)")
    for k in range(3):
        A(f"s_mul_i32 s4, s3, {k+1}"); A(f"s_mul_i32 s{40+k}, s{40+k}, {4*balA}"); A(f"s_sub_u32 s{40+k}, s4, s{40+k}")
        A(f"s_add_u32 s{40+k}, s{40+k}, 2"); A(f"s_lshr_b32 s{40+k}, s{40+k}, 2")
    assert 8 + 0.75 * balA <= 15.5
    A("s_lshl_b32 s41, s41, 8"); A("s_lshl_b32 s42, s42, 16"); A("s_or_b32 s40, s40, s41"); A("s_or_b32 s40, s40, s42")
    A("s_or_b32 s41, s40, 0x20000000"); A("s_lshl_b32 s40, s40, 8")
    A("s_lshl_b32 s3, s25, 3"); A("s_lshr_b32 s40, s40, s3"); A("s_lshr_b32 s41, s41, s3")
    A("s_and_b32 s40, s40, 0xff"); A("s_and_b32 s41, s41, 0xff"); A("s_sub_u32 s41, s41, s40")
    A("s_lshl_b32 s40, s40, 16"); A("s_lshl_b32 s41, s41, 8"); A("s_or_b32 s40, s40, s41")
    A("s_cmp_eq_u32 vcc_lo, 0"); A("s_cselect_b32 s3, 3, 1"); A("s_or_b32 s40, s40, s3", "first pool tile << 16 | count << 8 | same-XCD << 1 | 1")
    A("v_mov_b32 v10, s40")
    A(f"ds_write_b32 v13, v10 offset:{FLG}")
    for t in range(7): kload(t)
    LBL("L_qwait")
    A(f"ds_read_b32 v10, v13 offset:{FLG}")
    A("s_waitcnt lgkmcnt(0)")
    A("v_readfirstlane_b32 s53, v10")
    A("s_cmp_lg_u32 s53, 0"); A("s_cbranch_scc1 L_qready")
    A("s_sleep 2"); A("s_branch L_qwait")
    LBL("L_qready")
    STAMP(3)
    A("v_lshlrev_b32 v10, 8, v9"); A("v_lshl_add_u32 v10, v1, 4, v10")
    A("v_and_b32 v11, 1, v2"); A("v_lshl_add_u32 v10, v11, 6, v10", "q: head c>>2, dim half c&1")
    for j in range(2):
        A(f"ds_read_b128 v[{16+4*j}:{19+4*j}], v10 offset:{QB + j*128}")
    A("v_and_b32 v10, 3, v2"); A("v_cmp_eq_u32 s[56:57], 0, v10")
    A("s_lshl_b32 s3, s23, 3")
    A("v_lshlrev_b32 v11, 6, v9"); A("v_add_u32 v11, s3, v11")
    A("v_lshlrev_b32 v12, 6, v1"); A("v_add_u32 v14, s3, v12")
    A("s_lshl_b32 s3, s23, 11"); A("v_add_u32 v15, s3, v8")
    A("s_bfe_u32 s3, s53, 0x80010"); A("s_add_u32 s3, s3, s23")
    A("s_lshl_b32 s3, s3, 3"); A("s_add_u32 s3, s3, 7"); A("s_lshl_b32 s51, s3, 12"); A("s_add_u32 s52, s51, 0x40000")
    A("s_bfe_u32 s3, s53, 0x80008")
    A("s_cmp_le_u32 s3, s23"); A("s_cbranch_scc1 L_body7")
    A("s_add_u32 s4, s23, 8"); A("s_cmp_gt_u32 s3, s4"); A("s_cbranch_scc1 L_body9")
    def body(n):
        LBL(f"L_body{n}")
        for t in range(7, n): kload(t)
        A("s_waitcnt lgkmcnt(0)")
        def fold(t):
            d = 72 + 8*(t % 2); s = 36 + 4*t
            for r in range(4): A(f"v_permlane32_swap_b32 v{d+r}, v{d+4+r}")
            A("s_nop 0")
            for r in range(4): A(f"v_add_f32_dpp v{s+r}, v{d+4+r}, v{d+r} quad_perm:[1,0,3,2] {D}")
        C("scores; each consumed K tile is replaced by the V tile of the same keys")
        for t in range(n):
            A(f"s_waitcnt vmcnt({4*(n-1)})")
            d = 72 + 8*(t % 2)
            for z in range(2):
                for j in range(2):
                    r = KV(t) + 8*z + 4*j
                    A(f"v_mfma_f32_16x16x32_bf16 v[{d+4*z}:{d+4*z+3}], v[{r}:{r+3}], v[{16+4*j}:{19+4*j}], " + ("0" if j == 0 else f"v[{d+4*z}:{d+4*z+3}]"))
            vload(t)
            if t > 0: fold(t - 1)
        A("s_nop 0")
        fold(n - 1)
        STAMP(4)
        C("softmax numerators against this wave's max")
        regs = list(range(36, 36 + 4*n))
        A(f"v_max3_f32 v10, v{regs[0]}, v{regs[1]}, v{regs[2]}")
        for i in range(3, len(regs) - 1, 2):
            A(f"v_max3_f32 v10, v10, v{regs[i]}, v{regs[i+1]}")
        A(f"v_max_f32 v10, v10, v{regs[-1]}")
        A("v_mov_b32 v5, v10"); A("s_nop 1")
        A("v_permlane16_swap_b32 v10, v5"); A("v_max_f32 v10, v10, v5")
        A("v_mov_b32 v5, v10"); A("s_nop 1")
        A("v_permlane32_swap_b32 v10, v5"); A("v_max_f32 v10, v10, v5")
        A("v_mul_f32 v10, s71, v10")
        for r in regs: A(f"v_fma_f32 v{r}, v{r}, s71, -v10")
        for r in regs: A(f"v_exp_f32 v{r}, v{r}")
        A("s_mov_b64 exec, s[56:57]")
        A(f"ds_write_b32 v11, v10 offset:{MX}")
        A("s_mov_b64 exec, -1")
        for i in range(2*n): A(f"v_cvt_pk_bf16_f32 v{16+i}, v{36+2*i}, v{37+2*i}")
        A("s_nop 1")
        nb = (n + 1) // 2
        for u in range(nb):
            c = "0" if u == 0 else "v[104:107]"
            if 2*u + 1 < n: A(f"v_mfma_f32_16x16x32_bf16 v[104:107], v[{16+4*u}:{19+4*u}], v[108:111], {c}")
            else:
                A("s_nop 5")
                A(f"v_mfma_f32_16x16x16_bf16 v[104:107], v[{16+4*u}:{17+4*u}], v[108:109], {c}")
        A("v_mov_b32 v5, 1")
        A("s_nop 6")
        A(f"ds_write_b32 v14, v104 offset:{MX+4}")
        A("s_mov_b64 exec, 1")
        A(f"ds_add_u32 v13, v5 offset:{FLG+4}")
        A("s_mov_b64 exec, -1")
        STAMP(5)
        C("P @ V (V transposed in registers)")
        for u in range(nb):
            full = 2*u + 1 < n
            nk = 4 if full else 2
            P = f"v[{16+4*u}:{16+4*u+nk-1}]"
            for kk in range(nk):
                m = 8*u + 2*kk + 1
                A(f"s_waitcnt vmcnt({4*n - 1 - m})")
                lo, hi = 112 + 4*(m-1), 112 + 4*m
                seq = [f"v_perm_b32 v{36+4*j+kk}, v{hi+j//2}, v{lo+j//2}, {SEL(j)}" for j in range(8)]
                if kk < nk - 1:
                    for x in seq: A(x)
                else:
                    A(seq[0]); A(seq[1]); A(seq[2])
                    for j in range(8):
                        a = 72 + 4*j
                        c = "0" if u == 0 else f"v[{a}:{a+3}]"
                        if full: A(f"v_mfma_f32_16x16x32_bf16 v[{a}:{a+3}], {P}, v[{36+4*j}:{39+4*j}], {c}")
                        else:    A(f"v_mfma_f32_16x16x16_bf16 v[{a}:{a+3}], {P}, v[{36+4*j}:{37+4*j}], {c}")
                        if j + 3 < 8: A(seq[j+3])
    body(8); A("s_branch L_pvdone")
    body(9); A("s_branch L_pvdone")
    body(7)
    LBL("L_pvdone")
    STAMP(6)
    A("s_nop 0")
    A("ds_write2st64_b32 v15, v72, v76 offset0:0 offset1:1")
    A("ds_write2st64_b32 v15, v80, v84 offset0:2 offset1:3")
    A("s_nop 2")
    A("ds_write2st64_b32 v15, v88, v92 offset0:4 offset1:5")
    A("s_nop 1")
    A("ds_write2st64_b32 v15, v96, v100 offset0:6 offset1:7")
    A("s_cmp_ge_u32 s23, 4"); A("s_cbranch_scc1 L_late")
    if presum:
        A("s_mov_b64 exec, 1"); A(f"ds_add_u32 v13, v5 offset:{FLG+12}"); A("s_mov_b64 exec, -1")
    C("waves 0-3. wo goes straight to LDS: chunk c of row 4i+g is fetched from chunk c ^ 2h, h = g | (i&2)<<1")
    A("v_lshlrev_b32 v3, 1, v1"); A("v_xor_b32 v3, v3, v2"); A("v_lshlrev_b32 v3, 4, v3"); A("v_lshl_add_u32 v3, v1, 10, v3")
    A("v_xor_b32 v4, 0x80, v3")
    A("s_lshl_b32 s3, s23, 9"); A("v_add_u32 v11, s3, v8")
    C("transposing B reads: row 8g + r, 32-byte group j ^ (r | (g&1)<<2), 8-byte piece c&3 (r = c>>2)")
    A("v_and_b32 v15, 1, v1"); A("v_lshl_add_u32 v15, v15, 2, v9"); A("v_xor_b32 v15, s23, v15")
    A("v_lshl_add_u32 v14, v1, 3, v9"); A("v_lshlrev_b32 v14, 8, v14"); A("v_lshl_add_u32 v14, v15, 5, v14")
    A("v_and_b32 v15, 3, v2"); A("v_lshl_add_u32 v14, v15, 3, v14")
    A("v_xor_b32 v98, 0x80, v14")
    A("v_mul_u32_u24 v15, 272, v2"); A("v_lshl_add_u32 v15, v1, 4, v15")
    A("v_lshlrev_b32 v101, 4, v1")
    C("output partials [branch][head][Y][wave][batch][16] x {column 16*wave + c, column 16*wave + 64 + c}")
    A("s_lshl_b32 s3, s54, 14"); A("s_lshl_b32 s29, s25, 12"); A("s_add_u32 s3, s3, s29")
    A("s_lshl_b32 s29, s23, 10"); A("s_add_u32 s7, s3, s29")
    A("v_lshlrev_b32 v97, 4, v0")
    A("s_mov_b32 s56, 0x55555555"); A("s_mov_b32 s57, 0x55555555")
    A("v_mov_b32 v5, 1")
    A("s_lshl_b32 s6, s25, 5"); A("s_add_u32 s6, s6, s54", "final reducer id")
    if f4:
        A("v_lshrrev_b32 v8, 1, v0"); A("v_and_b32 v9, 1, v0"); A("s_lshl_b32 s4, s23, 1"); A("v_add_u32 v9, s4, v9")
    else:
        A("v_lshrrev_b32 v8, 3, v0"); A("v_and_b32 v9, 7, v0")
    A("v_lshlrev_b32 v8, 14, v8"); A("v_lshl_add_u32 v8, v9, 4, v8")
    A("s_lshl_b32 s29, s6, 7"); A("v_add_u32 v8, s29, v8")
    A("s_bfe_u32 s4, s6, 0x20001"); A("s_lshl_b32 s4, s4, 11")
    A("s_lshl_b32 s5, s28, 10"); A("s_add_u32 s4, s4, s5")
    A("s_lshl_b32 s5, s25, 8"); A("s_add_u32 s4, s4, s5")
    A("s_and_b32 s5, s6, 1"); A("s_lshl_b32 s5, s5, 4"); A("s_add_u32 s4, s4, s5")
    A("s_bfe_u32 s5, s6, 0x20003"); A("s_lshl_b32 s5, s5, 5"); A("s_add_u32 s4, s4, s5")
    A("v_lshlrev_b32 v9, 1, v9"); A("v_add_u32 v9, s4, v9")
    A("v_lshrrev_b32 v7, 5, v0"); A("v_lshl_add_u32 v9, v7, 7, v9")
    A(f"s_mov_b32 s29, {spin}")
    LBL("L_cnt")
    A(f"ds_read_b32 v10, v13 offset:{FLG+4}")
    A("s_waitcnt lgkmcnt(0)")
    A("v_readfirstlane_b32 s4, v10")
    A("s_cmp_ge_u32 s4, 8"); A("s_cbranch_scc1 L_cntok")
    A("s_sleep 2"); A("s_branch L_cnt")
    LBL("L_cntok")
    for i in range(4): A(f"ds_read_b128 v[{16+4*i}:{19+4*i}], v12 offset:{MX + 16*i}")
    def woloads(lo, hi):
        for i in range(lo, hi):
            A(f"s_add_u32 m0, s16, {i*1024}")
            A(f"s_mov_b32 s3, {i*4096}")
            A(f"buffer_load_dwordx4 {'v4' if i & 2 else 'v3'}, s[12:15], s3 offen nt lds")
    woloads(0, 8 - wl)
    for r in (81, 83, 33): A(f"v_mov_b32 v{r}, s22")
    A("s_waitcnt lgkmcnt(0)")
    A("v_max3_f32 v44, v16, v18, v20"); A("v_max3_f32 v44, v44, v22, v24"); A("v_max3_f32 v44, v44, v26, v28"); A("v_max_f32 v44, v44, v30")
    for w in range(8): A(f"v_sub_f32 v{36+w}, v{16+2*w}, v44")
    for w in range(8): A(f"v_exp_f32 v{36+w}, v{36+w}")
    A("s_nop 0")
    A("v_mul_f32 v46, v36, v17")
    for w in range(1, 8): A(f"v_fmac_f32 v46, v{36+w}, v{17+2*w}")
    A("v_log_f32 v45, v46"); A("v_rcp_f32 v46, v46")
    A("s_nop 0")
    A("v_add_f32 v35, v44, v45", "log2-sum-exp of this split")
    for w in range(8): A(f"v_mul_f32 v{36+w}, v{36+w}, v46")
    A("v_xor_b32 v35, s22, v35")
    def red(lo, hi):
        for ww in range(lo, hi): A(f"ds_read2st64_b32 v[{16+2*ww}:{17+2*ww}], v11 offset0:{ww*8} offset1:{ww*8+1}")
        for ww in range(lo, hi):
            A(f"s_waitcnt lgkmcnt({hi - 1 - ww})")
            if ww == 0: A("v_mul_f32 v32, v36, v16"); A("v_mul_f32 v34, v36, v17")
            else: A(f"v_fmac_f32 v32, v{36+ww}, v{16+2*ww}"); A(f"v_fmac_f32 v34, v{36+ww}, v{17+2*ww}")
    if presum:
        LBL("L_ps")
        A(f"ds_read_b32 v10, v13 offset:{FLG+12}")
        A("s_waitcnt lgkmcnt(0)")
        A("v_readfirstlane_b32 s4, v10")
        A("s_cmp_ge_u32 s4, 4"); A("s_cbranch_scc0 L_ps")
        red(0, 4)
    if th:
        LBL("L_th")
        A(f"ds_read_b32 v10, v13 offset:{FLG+12}")
        A("s_waitcnt lgkmcnt(0)")
        A("v_readfirstlane_b32 s4, v10")
        A(f"s_cmp_ge_u32 s4, {th}"); A("s_cbranch_scc0 L_th")
        woloads(8 - wl, 8)
    A("s_barrier", "all partial o are in LDS")
    STAMP(7)
    red(4 if presum else 0, 8)
    A("v_cvt_pk_bf16_f32 v32, v32, v34")
    A("s_nop 1")
    A(f"v_mov_b32_dpp v34, v32 quad_perm:[1,0,3,2] {D}")
    A("s_mov_b64 exec, s[56:57]")
    A("global_store_dwordx4 v6, v[32:35], s[60:61] sc1")
    A("s_mov_b64 exec, -1")
    if tst: STAMP(4)
    if not th: woloads(8 - wl, 8)
    A("buffer_load_dword v148, v97, s[64:67], s7 offen sc1", "pull the lines written below into L2 (values unused)")
    A("global_load_dword v149, v13, s[18:19]", "warm the d_out translation (value unused)")
    A("s_waitcnt vmcnt(3)" if th else "s_waitcnt vmcnt(2)")
    if tst: STAMP(5)
    A("s_mov_b64 exec, 1"); A(f"ds_add_u32 v13, v5 offset:{FLG+8}"); A("s_mov_b64 exec, -1")
    LBL("L_bf")
    A(f"ds_read_b32 v16, v13 offset:{FLG+8}")
    A("s_waitcnt lgkmcnt(0)")
    A("v_readfirstlane_b32 s4, v16")
    A("s_cmp_ge_u32 s4, 4"); A("s_cbranch_scc0 L_bf")
    for z in range(2):
        for ks in range(4):
            for hf in range(2):
                r = 48 + 16*z + 4*ks + 2*hf
                A(f"ds_read_b64_tr_b16 v[{r}:{r+1}], {'v98' if z else 'v14'} offset:{WOT + ks*8192 + hf*1024}")
        A("s_waitcnt lgkmcnt(0)")
    A("s_barrier", "combined o is in LDS")
    STAMP(8)
    A(f"ds_read_b128 v[40:43], v101 offset:{LS}")
    for ks in range(4):
        A(f"ds_read_b128 v[{16+4*ks}:{19+4*ks}], v15 offset:{OB + ks*64}")
    C("split weights 2^(lse - max), in the shadow of the matrix work")
    fill = [["v_max3_f32 v44, v40, v41, v42", "v_max_f32 v44, v44, v43"], ["v_sub_f32 v40, v40, v44", "v_sub_f32 v41, v41, v44"],
            ["v_sub_f32 v42, v42, v44", "v_sub_f32 v43, v43, v44"], ["v_exp_f32 v40, v40"], ["v_exp_f32 v41, v41"], ["v_exp_f32 v42, v42"],
            ["v_exp_f32 v43, v43"], []]
    for ks in range(4):
        A(f"s_waitcnt lgkmcnt({3 - ks})")
        for z in range(2):
            d = 32 + 4*z
            A(f"v_mfma_f32_16x16x32_bf16 v[{d}:{d+3}], v[{16+4*ks}:{19+4*ks}], v[{48+16*z+4*ks}:{51+16*z+4*ks}], " + ("0" if ks == 0 else f"v[{d}:{d+3}]"))
            for x in fill[2*ks + z]: A(x)
    A("v_add_f32 v44, v40, v41"); A("v_add_f32 v45, v42, v43"); A("v_add_f32 v44, v44, v45")
    A("v_rcp_f32 v44, v44")
    A("s_bitcmp1_b32 s53, 1")
    A("s_nop 0")
    A("v_mul_f32 v80, v40, v32"); A("v_fmac_f32 v80, v41, v33")
    A("v_mul_f32 v82, v40, v36"); A("v_fmac_f32 v82, v41, v37")
    for r in range(2, 4):
        A(f"v_fmac_f32 v80, v{40+r}, v{32+r}"); A(f"v_fmac_f32 v82, v{40+r}, v{36+r}")
    A("v_mul_f32 v80, v80, v44"); A("v_mul_f32 v82, v82, v44")
    A("s_cbranch_scc1 L_ostl")
    A("buffer_store_dwordx4 v[80:83], v97, s[64:67], s7 offen sc1")
    A("s_branch L_ostd")
    LBL("L_ostl")
    A("buffer_store_dwordx4 v[80:83], v97, s[64:67], s7 offen", "all 32 readers reported this XCD: L2 is enough")
    LBL("L_ostd")
    if tst: STAMP(1)
    if f4:
        LBL("L_f4")
        A("buffer_load_dwordx4 v[16:19], v8, s[64:67], 0 offen sc1")
        A("s_waitcnt vmcnt(0)")
        A("v_cmpx_eq_u32 vcc, s22, v17"); A("v_cmpx_eq_u32 vcc, s22, v19")
        A("s_cmp_eq_u64 exec, -1")
        A("s_mov_b64 exec, -1")
        A("s_cbranch_scc1 L_f4ok")
        A("s_sub_u32 s29, s29, 1"); A("s_cbranch_scc0 L_f4")
        LBL("L_f4ok")
        if tst: STAMP(2)
        A("s_nop 0")
        A("v_permlane32_swap_b32 v16, v18")
        A("v_add_f32 v16, v16, v18")
        for x in ("quad_perm:[2,3,0,1]", "row_ror:4", "row_ror:8"):
            A("s_nop 1"); A(f"v_add_f32_dpp v16, v16, v16 {x} {D}")
        A("v_mov_b32 v17, v16"); A("s_nop 1")
        A("v_permlane16_swap_b32 v16, v17")
        A("v_add_f32 v16, v16, v17")
        A("s_mov_b32 exec_lo, 3"); A("s_mov_b32 exec_hi, 3")
        A("v_cvt_pk_bf16_f32 v16, v16, v16")
        A("global_store_short v9, v16, s[18:19]")
        A("s_or_b32 s6, s6, s23")
        A("s_branch L_ep")
    LBL("L_late")
    if th:
        A("s_mov_b64 exec, 1"); A(f"ds_add_u32 v13, v5 offset:{FLG+12}"); A("s_mov_b64 exec, -1")
    A("s_waitcnt lgkmcnt(0)")
    A("s_barrier")
    A("s_atomic_add s17, s[58:59], 0", "hint only: the tags decide")
    STAMP(7)
    A("v_lshrrev_b32 v11, 5, v0"); A("v_mul_u32_u24 v10, 272, v11")
    A("v_and_b32 v12, 7, v0"); A("v_lshl_add_u32 v10, v12, 5, v10"); A("v_bfe_u32 v12, v0, 3, 2"); A("v_lshl_add_u32 v10, v12, 2, v10")
    A("s_mul_i32 s3, s63, 1088"); A(f"s_add_u32 s3, s3, {OB}"); A("v_add_u32 v10, s3, v10")
    A("s_lshl_b32 s3, s63, 4"); A(f"s_add_u32 s3, s3, {LS}"); A("v_lshlrev_b32 v11, 2, v11"); A("v_add_u32 v11, s3, v11")
    A(f"s_mov_b32 s29, {spin}")
    LBL("L_sg")
    A("s_load_dwordx2 s[4:5], s[10:11], 0 glc")
    A("s_waitcnt lgkmcnt(0)")
    A("s_cmp_eq_u32 s5, s22"); A("s_cselect_b32 s4, s4, 0")
    A("s_cmp_ge_u32 s4, 4"); A("s_cbranch_scc1 L_sgok")
    if asl:
        A("s_cmp_ge_u32 s4, 3"); A("s_cbranch_scc1 L_sg3")
        A(f"s_sleep {asl}")
        LBL("L_sg3")
    A("s_sub_u32 s29, s29, 1"); A("s_cbranch_scc0 L_sg")
    A("s_mov_b32 s29, 0")
    LBL("L_sgok")
    if tst: STAMP(3)
    ld = [f"global_load_dwordx4 v[{16+4*y}:{19+4*y}], v7, s[60:61] offset:{y*1024} sc1" for y in range(2)]
    A(ld[0]); A(ld[1])
    LBL("L_opoll")
    A("s_waitcnt vmcnt(0)")
    A(f"v_mov_b32_dpp v32, v19 row_ror:1 {D}"); A(f"v_mov_b32_dpp v33, v23 row_ror:1 {D}")
    A("v_cmpx_eq_u32 vcc, s22, v17"); A("v_cmpx_eq_u32 vcc, s22, v21")
    A("v_cmpx_eq_u32 vcc, v32, v19"); A("v_cmpx_eq_u32 vcc, v33, v23")
    A("s_cmp_eq_u64 exec, -1")
    A("s_mov_b64 exec, -1")
    A("s_cbranch_scc1 L_opoll_ok")
    A("v_cmp_ne_u32 s[44:45], s22, v17"); A("v_cmp_ne_u32 s[46:47], s22, v21")
    A("s_or_b64 s[72:73], s[44:45], s[46:47]")
    A("s_cbranch_scc1 L_opoll_r")
    A("s_mov_b64 s[44:45], -1"); A("s_mov_b64 s[46:47], -1")
    LBL("L_opoll_r")
    A("s_sub_u32 s29, s29, 1"); A("s_cbranch_scc1 L_opoll_ok")
    for y in range(2):
        A(f"s_mov_b64 exec, s[{44+2*y}:{45+2*y}]")
        A(f"s_cbranch_execz L_opoll_s{y}")
        A(ld[y])
        LBL(f"L_opoll_s{y}")
    A("s_mov_b64 exec, -1")
    A("s_branch L_opoll")
    LBL("L_opoll_ok")
    if tst: STAMP(4)
    A("ds_write2_b32 v10, v16, v18 offset0:0 offset1:4")
    A("ds_write2_b32 v10, v20, v22 offset0:136 offset1:140")
    A("v_xor_b32 v19, s22, v19"); A("v_xor_b32 v23, s22, v23")
    A("s_mov_b32 exec_lo, 1"); A("s_mov_b32 exec_hi, 1")
    A("ds_write2_b32 v11, v19, v23 offset0:0 offset1:2")
    A("s_waitcnt lgkmcnt(0)")
    A("s_barrier")
    STAMP(8)
    A(f"s_branch {END}")
    LBL("L_ep")
    A("s_mov_b64 exec, 1")
    A("s_cmp_lg_u32 s6, 0"); A("s_cbranch_scc1 L_noep")
    A("global_store_dword v13, v81, s[74:75]", "every workgroup of this branch has read the epoch word by now")
    LBL("L_noep")
    if pad:
        A(f"s_add_u32 s96, s96, {pad*100}")
        LBL("L_pad")
        A("s_memrealtime s[98:99]"); A("s_waitcnt lgkmcnt(0)")
        A("s_sub_u32 s98, s98, s96"); A("s_cmp_lt_i32 s98, 0"); A("s_cbranch_scc1 L_pad")
    if stamps:
        LBL("L_dump")
        STAMP(9)
        A("s_mov_b64 exec, 1")
        A("s_waitcnt lgkmcnt(0)")
        A("s_lshl_b32 s3, s2, 3"); A("s_add_u32 s3, s3, s23")
        A(f"s_mul_i32 s3, s3, 96"); A(f"s_add_u32 s3, s3, {STAMP_OFF}")
        A("s_add_u32 s20, s20, s3"); A("s_addc_u32 s21, s21, 0")
        A("s_getreg_b32 s96, hwreg(HW_REG_XCC_ID)"); A("s_getreg_b32 s97, hwreg(HW_REG_HW_ID)")
        A("v_mov_b32 v12, 0")
        for i in range(11):
            A(f"v_mov_b32 v16, s{76+2*i}"); A(f"v_mov_b32 v17, s{77+2*i}")
            A(f"global_store_dwordx2 v12, v[16:17], s[20:21] offset:{8*i}")
            A("s_nop 1")
    LBL("L_end")
    A("s_endpgm")
    L.append('.section .rodata,"a"'); L.append(".p2align 6"); L.append(f".amdhsa_kernel {NAME}_kernel")
    for s in ["next_free_vgpr 256", f"next_free_sgpr {100 if (stamps or pad) else 76}", "accum_offset 256", "group_segment_fixed_size 0", "kernarg_size 104",
              "user_sgpr_count 2", "user_sgpr_kernarg_segment_ptr 1", "system_sgpr_workgroup_id_x 1"]:
        L.append("  .amdhsa_" + s)
    L.append(".end_amdhsa_kernel")
    return "\n".join(L) + "\n"

if __name__ == "__main__":
    open("fin4.s", "w").write(gen())
    open("fin4_ts.s", "w").write(gen(stamps=True, tst=1))
    import gen_f3
    open("fin3_ts.s", "w").write(gen_f3.gen(stamps=True, tst=1))
```
